```python
import torch

def _softmax(x, axis=-1):
    return torch.softmax(x, dim=axis)
def _gelu(x):
    return torch.nn.functional.gelu(x, approximate="tanh")
def _silu(x):
    return torch.nn.functional.silu(x)
def _sigmoid(x):
    return torch.sigmoid(x)
def _layernorm(x, axis=-1, eps=1e-5):
    m = x.mean(dim=axis, keepdim=True)
    v = x.var(dim=axis, keepdim=True, unbiased=False)
    return (x - m) / torch.sqrt(v + eps)
def _scatter_add(tgt, idx, src, axis=0):
    return tgt.clone().index_add_(axis, idx, src)
def _segment_sum(src, seg, n):
    out = torch.zeros((n,) + src.shape[1:], dtype=src.dtype)
    return out.index_add_(0, seg, src)
def _pad(x, pw):
    flat = tuple(v for pair in reversed(pw) for v in pair)
    return torch.nn.functional.pad(x, flat)

kernel_name = 'concat_heads__spectral_fnet__sliding_local_dilated__prompt'

def setup_inputs():

    _w = (lambda a: (lambda t: t.to(torch.bfloat16) if t.is_floating_point() else t)(torch.as_tensor(a)))
    def _A_setup():
        B, S, D = 1, 2048, 576
        ns = torch.arange(S)[:, None] * torch.arange(S)[None, :]
        nd = torch.arange(D)[:, None] * torch.arange(D)[None, :]
        Ws_re = torch.cos(-2.0 * torch.pi * ns / S).to(float)
        Ws_im = torch.sin(-2.0 * torch.pi * ns / S).to(float)
        Wd_re = torch.cos(-2.0 * torch.pi * nd / D).to(float)
        Wd_im = torch.sin(-2.0 * torch.pi * nd / D).to(float)
        return {
            "x": _w((lambda *s: torch.randn(*s, dtype=torch.bfloat16) * 0.05)(B, S, D)),
            "dft_seq_re": _w(Ws_re),
            "dft_seq_im": _w(Ws_im),
            "dft_hid_re": _w(Wd_re),
            "dft_hid_im": _w(Wd_im),
        }
    _A_in = _A_setup()

    def _B_setup():
        B, S, D = 1, 2048, 576
        return {
            "x": _w((lambda *s: torch.randn(*s, dtype=torch.bfloat16) * 0.2)(B, S, D)),
            "wqkv": _w((lambda *s: torch.randn(*s, dtype=torch.bfloat16) * 0.8)(D, 3 * D)),
            "wo": _w((lambda *s: torch.randn(*s, dtype=torch.bfloat16) * 0.2)(D, D)),
        }
    _B_in = _B_setup()

    return {
        "A_x": _A_in["x"],
        "A_dft_seq_re": _A_in["dft_seq_re"],
        "A_dft_seq_im": _A_in["dft_seq_im"],
        "A_dft_hid_re": _A_in["dft_hid_re"],
        "A_dft_hid_im": _A_in["dft_hid_im"],
        "B_x": _B_in["x"],
        "B_wqkv": _B_in["wqkv"],
        "B_wo": _B_in["wo"],
    }

def reference(A_x, A_dft_seq_re, A_dft_seq_im, A_dft_hid_re, A_dft_hid_im, B_x, B_wqkv, B_wo):
    def _A_ref(x, dft_seq_re, dft_seq_im, dft_hid_re, dft_hid_im):
        a = torch.einsum("bsd,ed->bse", x, dft_hid_re)
        b = torch.einsum("bsd,ed->bse", x, dft_hid_im)
        y = torch.einsum("ts,bse->bte", dft_seq_re, a) - torch.einsum("ts,bse->bte", dft_seq_im, b)
        return y

    def _B_ref(x, wqkv, wo):
        B, S, D = x.shape
        H = 32; Dh = D // H
        W, dil = 8, 2
        qkv = (lambda x, *d: x.permute(*d))((x @ wqkv).reshape(B, S, 3, H, Dh), 2, 0, 3, 1, 4)
        q, k, v = qkv[0], qkv[1], qkv[2]
        scale = Dh ** -0.5
        pos = torch.arange(S)
        off = torch.arange(W) * dil
        idx = pos[:, None] - off[None, :]
        mask = idx >= 0
        idx_c = torch.where(mask, idx, 0).reshape(-1)
        kg = k[:, :, idx_c, :].reshape(B, H, S, W, Dh)
        vg = v[:, :, idx_c, :].reshape(B, H, S, W, Dh)
        logits = torch.einsum("bhsd,bhswd->bhsw", q, kg) * scale
        logits = torch.where(mask[None, None, :, :], logits, -1e9)
        attn = _softmax(logits, axis=-1)
        o = torch.einsum("bhsw,bhswd->bhsd", attn, vg)
        return (lambda x, *d: x.permute(*d))(o, 0, 2, 1, 3).reshape(B, S, D) @ wo

    a = _A_ref(A_x, A_dft_seq_re, A_dft_seq_im, A_dft_hid_re, A_dft_hid_im)
    b = _B_ref(B_x, B_wqkv, B_wo)
    return torch.concatenate([a, b], axis=-1)
```

```python
import re

def v(n, c=1): return f"v{n}" if c == 1 else f"v[{n}:{n+c-1}]"
def a(n, c=1): return f"a{n}" if c == 1 else f"a[{n}:{n+c-1}]"
def s(n, c=1): return f"s{n}" if c == 1 else f"s[{n}:{n+c-1}]"

_reg = re.compile(r'^-?\|?([vas])(?:(\d+)|\[(\d+):(\d+)\])\|?$')
def regs(op):
    op = op.strip()
    if op == 'vcc': return {('s', 106), ('s', 107)}
    if op == 'exec': return {('s', 126), ('s', 127)}
    if op == 'm0': return {('s', 124)}
    m = _reg.match(op)
    if not m: return set()
    k = m.group(1)
    if m.group(2) is not None: return {(k, int(m.group(2)))}
    return {(k, i) for i in range(int(m.group(3)), int(m.group(4)) + 1)}

TRANS = ('v_exp_', 'v_log_', 'v_rcp_', 'v_rsq_', 'v_sqrt_', 'v_sin_', 'v_cos_')
NODST_S = ('s_cmp', 's_waitcnt', 's_barrier', 's_branch', 's_cbranch', 's_nop', 's_sleep', 's_setprio', 's_endpgm', 's_bitcmp')

class I:
    def __init__(self, text):
        self.text = text
        t = text.split(';')[0].strip()
        self.label = t[:-1] if t.endswith(':') else None
        self.kind = None; self.dst = set(); self.src = set(); self.A = self.B = self.C = set()
        self.mn = ''
        if self.label or not t or t.startswith('.'):
            self.kind = 'meta'; return
        p = t.split(None, 1); mn = self.mn = p[0]
        ops = []
        if len(p) > 1:
            ops = [o.strip() for o in p[1].split(',')]
        mods = ''
        if ops:
            q = ops[-1].split(None, 1); ops[-1] = q[0]; mods = q[1] if len(q) > 1 else ''
            for i, o in enumerate(ops):
                if ' ' in o:
                    q = o.split(None, 1); ops = ops[:i] + [q[0]]; mods = q[1]; break
        self.ops = ops; self.mods = mods
        R = [regs(o) for o in ops]
        U = lambda L: set().union(*L) if L else set()
        if mn.startswith('v_mfma'):
            self.kind = 'mfma'; self.dst = R[0]; self.A, self.B, self.C = R[1], R[2], R[3]; self.src = U(R[1:])
        elif mn.startswith('v_'):
            self.kind = 'valu'
            if mn.startswith('v_swap') or 'permlane' in mn:
                self.dst = U(R); self.src = U(R)
            else:
                self.dst = R[0]; self.src = U(R[1:])
                if 'fmac' in mn: self.src |= R[0]
        elif mn.startswith('ds_'):
            self.kind = 'ds'
            if 'read' in mn: self.dst = R[0]; self.src = U(R[1:])
            else: self.src = U(R)
        elif mn.startswith('buffer_'):
            self.kind = 'vmem'
            self.lds = 'lds' in mods.split()
            if 'load' in mn and not self.lds: self.dst = R[0]; self.src = U(R[1:])
            else: self.src = U(R)
            if self.lds: self.src |= {('s', 124)}
            self.wide = 'store' in mn and ('x3' in mn or 'x4' in mn)
            self.data = R[0] if 'store' in mn else set()
        elif mn.startswith('s_load') or mn.startswith('s_memrealtime') or mn.startswith('s_memtime'):
            self.kind = 'smem'; self.dst = R[0]; self.src = U(R[1:])
        elif mn.startswith('s_'):
            self.kind = 'salu'
            if mn.startswith(NODST_S): self.src = U(R)
            else: self.dst = R[0]; self.src = U(R[1:])
            if 'saveexec' in mn: self.dst |= regs('exec')
        else:
            raise ValueError('unknown instr ' + text)
        self.states = 1
        if mn == 's_nop': self.states = int(ops[0]) + 1

def isv(rs): return {r for r in rs if r[0] in 'va'}
def iss(rs): return {r for r in rs if r[0] == 's'}

def need(p, c):
    n = 0
    if p.kind == 'valu':
        wv = isv(p.dst); ws = iss(p.dst)
        if c.kind == 'mfma' and wv & c.src: n = max(n, 2)
        if c.kind == 'valu':
            if 'permlane' in c.mn and wv & c.src: n = max(n, 2)
            if ('readfirstlane' in c.mn or 'readlane' in c.mn) and wv & c.src: n = max(n, 1)
            if p.mn.startswith(TRANS) and wv & c.src: n = max(n, 1)
            if ws & c.src: n = max(n, 2)
            if 'op_sel' in p.mods and wv & (c.src | c.dst): n = max(n, 1)
        if c.kind == 'vmem' and ws & c.src: n = max(n, 5)
        if c.kind in ('salu', 'smem') and ws & c.src: n = max(n, 1)
    if p.kind == 'mfma':
        if c.kind == 'mfma':
            if p.dst & (c.A | c.B): n = max(n, 8)
            if p.dst & c.C and p.dst != c.C: n = max(n, 6)
            if p.dst & c.dst and p.dst != c.C: n = max(n, 6)
        elif c.kind in ('valu', 'ds', 'vmem'):
            if p.dst & (c.src | c.dst): n = max(n, 8)
            if p.C & c.dst: n = max(n, 3)
    if p.kind == 'salu' and ('s', 124) in p.dst and c.kind == 'vmem' and c.lds: n = max(n, 1)
    if p.kind == 'vmem' and p.wide and p.data & c.dst: n = max(n, 2)
    return n

class Asm:
    def __init__(self):
        self.L = []
    def __call__(self, *lines):
        for t in lines:
            if isinstance(t, (list, tuple)): self(*t)
            else:
                for u in t.split('\n'):
                    if u.strip(): self.L.append(u.strip())
    def finish(self, entries, verbose=False):
        ins = [I(t) for t in self.L]
        lab = {x.label: i for i, x in enumerate(ins) if x.label}
        lg = {}; vm = {}; nop = {}
        WIN = 10
        def walk():
            changed = False
            seen = set()
            stack = [(lab[e], (), (), ()) for e in entries]
            while stack:
                i, hist, pl, pv = stack.pop()
                hist = list(hist); pl = list(pl); pv = list(pv)
                while True:
                    x = ins[i]
                    if x.kind == 'meta':
                        if x.label:
                            key = (i, tuple(hist), tuple(pl), tuple(pv))
                            if key in seen: break
                            seen.add(key)
                        i += 1; continue
                    touch = x.src | x.dst
                    nl = None
                    for k, j in enumerate(pl):
                        if ins[j].dst & touch:
                            cnt = len(pl) - 1 - k
                            if any(ins[q].kind == 'smem' for q in pl): cnt = 0
                            nl = cnt if nl is None else min(nl, cnt)
                    if nl is not None:
                        nl = min(nl, 15)
                        if lg.get(i, 99) > nl: lg[i] = nl; changed = True
                    nv = None
                    for k, j in enumerate(pv):
                        if j >= 0 and ins[j].dst & touch:
                            cnt = len(pv) - 1 - k
                            nv = cnt if nv is None else min(nv, cnt)
                    if nv is not None:
                        nv = min(nv, 63)
                        if vm.get(i, 99) > nv: vm[i] = nv; changed = True
                    extra = 0
                    if i in lg or i in vm:
                        extra = 1
                        if i in lg:
                            if lg[i] == 0: pl = []
                            elif not any(ins[q].kind == 'smem' for q in pl): pl = pl[max(0, len(pl) - lg[i]):]
                        if i in vm: pv = pv[max(0, len(pv) - vm[i]):] if vm[i] else []
                    nn = 0
                    for (j, d) in hist:
                        r = need(ins[j], x) - d - extra
                        if r > nn: nn = r
                    if nn > nop.get(i, 0): nop[i] = nn; changed = True
                    adv = extra + nop.get(i, 0)
                    hist = [(j, d + adv + x.states) for (j, d) in hist if d + adv + x.states < WIN]
                    if x.kind in ('valu', 'mfma', 'vmem') or (x.kind == 'salu' and ('s', 124) in x.dst): hist.append((i, 0))
                    if x.mn == 's_waitcnt':
                        t = x.text.split(';')[0]
                        m = re.search(r'lgkmcnt\((\d+)\)', t)
                        if m:
                            n = int(m.group(1))
                            if n == 0: pl = []
                            elif not any(ins[q].kind == 'smem' for q in pl): pl = pl[max(0, len(pl) - n):]
                        m = re.search(r'vmcnt\((\d+)\)', t)
                        if m:
                            n = int(m.group(1)); pv = pv[max(0, len(pv) - n):] if n else []
                    if x.kind in ('ds', 'smem'): pl.append(i)
                    if x.kind == 'vmem':
                        pv.append(i if x.dst else -1)
                    while pv and pv[0] < 0: pv.pop(0)
                    while pl and not ins[pl[0]].dst: pl.pop(0)
                    assert len(pv) < 200 and len(pl) < 400, x.text
                    if x.mn == 's_endpgm': break
                    if x.mn == 's_branch':
                        i = lab[x.ops[0]]; continue
                    if x.mn.startswith('s_cbranch'):
                        stack.append((lab[x.ops[0]], tuple(hist), tuple(pl), tuple(pv)))
                    i += 1
            return changed
        it = 0
        while walk():
            it += 1
            assert it < 30
        out = []
        nn = 0
        for i, x in enumerate(ins):
            if i in lg or i in vm:
                w = []
                if i in vm: w.append(f"vmcnt({vm[i]})")
                if i in lg: w.append(f"lgkmcnt({lg[i]})")
                out.append("s_waitcnt " + " ".join(w))
            if nop.get(i, 0):
                out.append(f"s_nop {nop[i]-1}"); nn += nop[i]
            out.append(x.text)
        if verbose: print(f"instrs {len(ins)} auto-waits {len(set(lg)|set(vm))} nop-sites {sum(1 for k in nop.values() if k)} nop-states {nn}")
        return "\n".join(("" if (t.endswith(':') or t.startswith('.')) else "    ") + t for t in out) + "\n"

def weave(main, fill, span=None, first=0):
    span = span or len(main)
    out = []; k = 0; n = len(fill); g = span - first
    for i, m in enumerate(main):
        out.append(m)
        if i >= first:
            upto = n if i >= span - 1 else ((i - first + 1) * n + g - 1) // g
            while k < upto:
                out.append(fill[k]); k += 1
    out += fill[k:]
    return out
```

```python
import sys, math
from asmgen import *

KN = "concat_heads__spectral_fnet__sliding_local_dilated__prompt"
MF = "v_mfma_f32_16x16x32_bf16"
O_OFF, U_OFF, FL_OFF, ST_OFF, WS_SIZE = 0, 0x280000, 0x500000, 0x600000, 0x700000
AFL = 6144
OOB = 0x80000000
SX, SW, SW2, SW3, SWS, SOUT, SDBG = 28, 32, 36, 40, 44, 48, 52
sWave, sXc, sIdx, sRb, sHg, sT0, sT1, sT2 = 56, 57, 58, 59, 60, 61, 62, 63
sLX, sLW, sSlotW, sSlotR, sOffX, sOffW, sCnt, sCX, sCW = 64, 65, 66, 67, 68, 69, 26, 27, 3
sM = 70
sK = 96
sCg2, sV0 = 100, 101

class Cfg:
    fused = True; stamps = False; LcB = 20; LcA = 18; wo_split = (3, 4, 4, 4); nb1 = 120
    poll_max = 1 << 16
    x_nodma = False; x_nomfma = False; x_nord = False; cluster = False

def div(A, d, src, k, n):
    m = -(-65536 // k)
    assert all((x * m) >> 16 == x // k for x in range(n)), (k, n)
    A(f"v_mul_u32_u24 {v(d)}, {m}, {v(src)}", f"v_lshrrev_b32 {v(d)}, 16, {v(d)}")

def srd(A, r, nbytes):
    A(f"s_mov_b32 {s(r+2)}, {nbytes}", f"s_mov_b32 {s(r+3)}, 0x20000")

class Gen:
    def __init__(self, c):
        self.c = c; self.A = Asm(); self.uid = 0
    def lab(self, n):
        self.uid += 1; return f"L_{n}_{self.uid}"
    def stamp(self, k):
        if self.c.stamps: self.A(f"s_memrealtime {s(80+2*k,2)}")
    def sc(self): return " sc1" if self.c.fused else ""

    def entry(self, name, lA, lEnd):
        A = self.A
        A(f".globl {name}", ".p2align 8", f".type {name},@function", f"{name}:")
        A("s_cmp_ge_u32 s2, 256", f"s_cbranch_scc1 {lEnd}")
        A("s_load_dwordx16 s[4:19], s[0:1], 0", "s_load_dwordx4 s[20:23], s[0:1], 64", "s_load_dwordx2 s[24:25], s[0:1], 80")
        if self.c.stamps:
            for k in range(8): A(f"s_mov_b32 {s(80+2*k)}, 0")
        self.stamp(0)
        A("v_lshrrev_b32 v1, 6, v0", "v_and_b32 v0, 63, v0", f"v_readfirstlane_b32 {s(sWave)}, v1")
        A(f"s_and_b32 {s(sXc)}, s2, 7", f"s_lshr_b32 {s(sIdx)}, s2, 3")
        A("v_and_b32 v1, 15, v0", "v_lshrrev_b32 v2, 4, v0")
        srd(A, SWS, WS_SIZE); srd(A, SOUT, 2048*2304); srd(A, SDBG, 256)
        A(f"s_cmp_ge_u32 {s(sIdx)}, 24", f"s_cbranch_scc1 {lA}")
    def ptrs(self, m):
        A = self.A
        for r, p in m: A(f"s_mov_b64 {s(r,2)}, {s(p,2)}")
        A(f"s_mov_b64 {s(SWS,2)}, s[24:25]", f"s_mov_b64 {s(SOUT,2)}, s[20:21]", f"s_mov_b64 {s(SDBG,2)}, s[22:23]")
    def finish_role(self, lEnd, kidx=0):
        A = self.A
        if self.c.stamps:
            A("s_waitcnt vmcnt(0)")
            self.stamp(7)
            A("s_waitcnt lgkmcnt(0)")
            for k in range(8): A(f"v_mov_b32 {v(4+k)}, {s(80+2*k)}")
            A(f"s_lshl_b32 {s(sT0)}, s2, 2", f"s_add_u32 {s(sT0)}, {s(sT0)}, {s(sWave)}", f"s_lshl_b32 {s(sT0)}, {s(sT0)}, 5",
              f"s_add_u32 {s(sT0)}, {s(sT0)}, {ST_OFF + kidx*0x10000}", f"v_mov_b32 v3, {s(sT0)}", f"v_mov_b32 v12, {OOB}",
              "v_cmp_eq_u32 vcc, 0, v0", "v_cndmask_b32 v3, v12, v3, vcc",
              f"buffer_store_dwordx4 v[4:7], v3, {s(SWS,4)}, 0 offen", f"buffer_store_dwordx4 v[8:11], v3, {s(SWS,4)}, 0 offen offset:16")
        A("s_endpgm")

    def staged(self, nd, dma, slot, stepX, stepW, reads, mfmas, radv, Lc, mid_setup, tail):
        A = self.A
        NS = 9; tot = NS * nd
        wadv = [f"s_add_u32 {s(sSlotW)}, {s(sSlotW)}, {slot}", f"s_cmp_eq_u32 {s(sSlotW)}, {4*slot}",
                f"s_cselect_b32 {s(sSlotW)}, 0, {s(sSlotW)}", f"s_add_u32 {s(sLX)}, {s(sSlotW)}, {s(sCX)}",
                f"s_add_u32 {s(sLW)}, {s(sSlotW)}, {s(sCW)}", f"s_add_u32 {s(sOffX)}, {s(sOffX)}, {stepX}",
                f"s_add_u32 {s(sOffW)}, {s(sOffW)}, {stepW}"]
        sadv = [f"s_add_u32 {s(sSlotR)}, {s(sSlotR)}, {slot}", f"s_cmp_eq_u32 {s(sSlotR)}, {4*slot}",
                f"s_cselect_b32 {s(sSlotR)}, 0, {s(sSlotR)}"]
        def items(g0, g1):
            r = []
            for g in range(g0, min(g1, tot)):
                it = list(dma(g % nd))
                if g % nd == nd - 1: it.append(wadv)
                r.append(it)
            return r
        def mix(rd, its):
            out = []; rd = list(rd)
            per = max(1, len(rd) // max(1, len(its))) if its else 0
            if self.c.cluster:
                for it in its:
                    pre = it[0] if isinstance(it[0], list) else [it[0]]
                    rd.append(pre + [it[1]] + sum(it[2:], []))
                return rd
            for it in its:
                pre = it[0] if isinstance(it[0], list) else [it[0]]
                out += pre
                if rd: out.append(rd.pop(0))
                out.append(it[1])
                for _ in range(per - 1):
                    if rd: out.append(rd.pop(0))
                for e in it[2:]: out += e
            return out + rd
        A(f"s_mov_b32 {s(sSlotW)}, 0", f"s_mov_b32 {s(sSlotR)}, 0", f"s_mov_b32 {s(sOffX)}, 0", f"s_mov_b32 {s(sOffW)}, 0",
          f"s_mov_b32 {s(sLX)}, {s(sCX)}", f"s_mov_b32 {s(sLW)}, {s(sCW)}")
        for it in items(0, Lc): A(it)
        self.stamp(1)
        mid_setup()
        extra0 = self.extra_vm
        assert extra0 == 0
        A(f"s_waitcnt vmcnt({Lc-nd})", "s_barrier")
        self.stamp(2)
        A(reads(0, 0))
        h0 = (nd + 1) // 2
        nloop = (tot - Lc) // nd
        def stage(st, issued, last, t0, t1):
            i0 = items(issued, issued + h0); i1 = items(issued + h0, issued + nd)
            n0 = len(i0) + len(t0)
            m = mfmas(0)
            A(weave(m, mix(reads(1, 1), i0 + t0) + ([] if last else sadv), span=len(m) - 2))
            if not last:
                A(radv)
                w = min(issued, tot) + self.tail_cnt + n0 - nd * (st + 2)
                A(f"s_waitcnt vmcnt({max(w,0)})", "s_barrier")
            self.tail_cnt += len(t0) + len(t1)
            m = mfmas(1)
            A(weave(m, mix([] if last else reads(0, 0), i1 + t1), span=len(m) - 2))
        self.tail_cnt = 0
        if self.c.x_nodma:
            d0 = dma; dma = lambda n: [d0(n)[0], "s_nop 0"]
        if self.c.x_nomfma:
            m0_ = mfmas; mfmas = lambda st: ["s_nop 0"] * len(m0_(st))
        if self.c.x_nord:
            reads = lambda st, ks: []
        lp = self.lab("loop")
        A(f"s_mov_b32 {s(sCnt)}, {nloop}", f"{lp}:")
        stage(0, Lc, False, [], [])
        A(f"s_sub_u32 {s(sCnt)}, {s(sCnt)}, 1", f"s_cmp_lg_u32 {s(sCnt)}, 0", f"s_cbranch_scc1 {lp}")
        tl = [[] for _ in range(2 * (NS - nloop) - 4)] + tail
        for st in range(nloop, NS):
            k = 2 * (st - nloop)
            stage(st, Lc + st * nd, st == NS - 1, tl[k], tl[k + 1])

    VX, VW, AD, FR, ACC, QB, BIAS, SEL, ONE, MSK, GM, OA, OE, WOV = 10, 13, 20, 28, 108, 192, 216, 228, 232, 236, 238, 240, 243, 246
    HW, HR, FA, PA = 252, 253, 254, 255
    WO = 40960; HALO = 151552
    def b_ids(self):
        A = self.A
        A(f"s_lshr_b32 {s(sT0)}, {s(sXc)}, 1", f"s_mul_i32 {s(sRb)}, {s(sT0)}, 6", f"s_lshr_b32 {s(sT0)}, {s(sIdx)}, 2",
          f"s_add_u32 {s(sRb)}, {s(sRb)}, {s(sT0)}", f"s_and_b32 {s(sHg)}, {s(sXc)}, 1", f"s_lshl_b32 {s(sHg)}, {s(sHg)}, 2",
          f"s_and_b32 {s(sT0)}, {s(sIdx)}, 3", f"s_add_u32 {s(sHg)}, {s(sHg)}, {s(sT0)}",
          f"s_mul_i32 {s(sV0)}, {s(sRb)}, 88", f"s_sub_u32 {s(sV0)}, {s(sV0)}, 8")
    def b1_setup(self):
        A = self.A; VX, VW = self.VX, self.VW
        self.b_ids()
        srd(A, SX, 2048*1152); srd(A, SW, 576*3456); srd(A, SW2, 576*1152)
        A(f"s_mul_i32 {s(sCX)}, {s(sWave)}, 3072", f"s_mul_i32 {s(sCW)}, {s(sWave)}, 7168", f"s_add_u32 {s(sCW)}, {s(sCW)}, 12288")
        A(f"s_mul_i32 {s(sT0)}, {s(sWave)}, 24", "v_lshrrev_b32 v3, 3, v0", f"v_add_u32 v3, {s(sT0)}, v3", "v_and_b32 v4, 7, v0",
          f"v_mov_b32 v9, {OOB}")
        for n in range(3):
            A(f"v_add_u32 v5, {8*n}, v3", "v_bfe_u32 v6, v5, 1, 3", "v_xor_b32 v6, v6, v4", f"v_add_u32 v5, {s(sV0)}, v5",
              "v_and_b32 v7, 1023, v5", "v_lshrrev_b32 v8, 10, v5", "v_lshl_or_b32 v7, v7, 1, v8", "v_cmp_gt_u32 vcc, 2048, v5",
              "v_mul_u32_u24 v7, 1152, v7", "v_lshl_add_u32 v7, v6, 4, v7", f"v_cndmask_b32 {v(VX+n)}, v9, v7, vcc")
        A(f"s_mul_i32 {s(sT0)}, {s(sWave)}, {16*3456}", f"s_mul_i32 {s(sT1)}, {s(sHg)}, 144", f"s_add_u32 {s(sT0)}, {s(sT0)}, {s(sT1)}")
        for n in range(7):
            A(f"v_add_u32 v3, {64*n}, v0")
            div(A, 4, 3, 27, 448)
            A("v_mul_u32_u24 v5, 27, v4", "v_sub_u32 v5, v3, v5")
            div(A, 6, 5, 9, 27)
            A("v_mul_u32_u24 v6, 1008, v6", "v_lshl_add_u32 v5, v5, 4, v6",
              "v_bfe_u32 v6, v4, 1, 2", "v_and_b32 v7, 1, v4", "v_lshl_or_b32 v6, v7, 2, v6", "v_and_or_b32 v6, v4, 8, v6",
              "v_mul_u32_u24 v6, 3456, v6", f"v_add3_u32 {v(VW+n)}, v5, v6, {s(sT0)}")
            if n == 6: A("v_cmp_gt_u32 vcc, 48, v0", f"v_cndmask_b32 {v(VW+n)}, v9, {v(VW+n)}, vcc")
    def b1_mid(self):
        A = self.A; AD = self.AD
        A(f"s_lshr_b32 {s(sT0)}, {s(sWave)}, 1", f"s_mul_i32 {s(sT0)}, {s(sT0)}, 48",
          f"s_and_b32 {s(sT1)}, {s(sWave)}, 1")
        A(f"v_add_u32 v3, {s(sT0)}, v1", "v_lshrrev_b32 v4, 1, v1", "v_xor_b32 v4, v4, v2", "v_lshlrev_b32 v4, 4, v4",
          f"v_lshl_add_u32 {v(AD+4)}, v3, 7, v4", f"v_xor_b32 {v(AD+5)}, 64, {v(AD+4)}")
        A("v_lshrrev_b32 v4, 1, v2", "v_mul_u32_u24 v4, 7168, v4", "v_and_b32 v5, 1, v2", "v_bfe_u32 v6, v0, 2, 2",
          "v_lshl_add_u32 v5, v5, 2, v6", "v_mul_u32_u24 v5, 864, v5", f"s_mul_i32 {s(sT2)}, {s(sT1)}, 72",
          f"s_add_u32 {s(sT2)}, {s(sT2)}, 12288", f"v_add3_u32 v4, v4, v5, {s(sT2)}", "v_and_b32 v5, 3, v0",
          f"v_lshl_add_u32 {v(AD+6)}, v5, 3, v4", "v_cmp_eq_u32 vcc, 3, v5", "v_cndmask_b32 v5, v5, 1, vcc",
          "v_mul_u32_u24 v5, 144, v5", f"v_add3_u32 {v(AD+7)}, v4, v5, 32")
        for k in range(4): A(f"v_mov_b32 {v(AD+k)}, {v(AD+4+k)}")
        for r in range(84): A(f"v_mov_b32 {v(self.ACC+r)}, 0")
        A("v_mov_b32 v8, 0xf149f2ca", f"v_mov_b32 v9, {OOB}")
        A(f"s_lshl_b32 {s(sT2)}, {s(sHg)}, 1", f"s_add_u32 {s(sT2)}, {s(sT2)}, {s(sT1)}", f"s_lshl_b32 {s(sK)}, {s(sT2)}, 10",
          f"s_lshl_b32 {s(sK+1)}, {s(sHg)}, 8", f"s_add_u32 {s(sK+1)}, {s(sK+1)}, 16384", f"s_lshl_b32 {s(sT2)}, {s(sT1)}, 3",
          f"s_add_u32 {s(sK+1)}, {s(sK+1)}, {s(sT2)}")
        for i in range(3):
            A(f"v_add_u32 v4, {16*i}, v3", f"v_add_u32 v5, {s(sV0)}, v4",
              "v_and_b32 v6, 1023, v5", "v_min_u32 v6, 7, v6")
            for r in range(4):
                A("v_lshlrev_b32 v7, 2, v2", "v_sub_u32 v7, v1, v7", f"v_subrev_u32 v7, {r}, v7", "v_and_b32 v7, 15, v7",
                  "v_cmp_le_u32 vcc, v7, v6", f"v_cndmask_b32 {v(self.BIAS+4*i+r)}, v8, 0, vcc")
            A("v_lshrrev_b32 v6, 4, v5", "v_mul_u32_u24 v6, 18432, v6", "v_and_b32 v7, 15, v5", "v_lshl_add_u32 v6, v7, 4, v6",
              "v_cmp_le_u32 vcc, 8, v4", f"v_cmp_gt_u32 {s(sM,2)}, 2048, v5" if False else f"v_mov_b32 v7, 2048",
              f"v_cmp_gt_u32 {s(sM,2)}, v7, v5", f"s_and_b64 vcc, vcc, {s(sM,2)}",
              "v_lshl_add_u32 v7, v2, 8, v6", f"v_add_u32 v7, {s(sK)}, v7", f"v_cndmask_b32 {v(self.OA+i)}, v9, v7, vcc",
              f"v_cmp_gt_u32 {s(sM,2)}, 2, v2", f"s_and_b64 vcc, vcc, {s(sM,2)}",
              "v_lshl_add_u32 v7, v2, 2, v6", f"v_add_u32 v7, {s(sK+1)}, v7", f"v_cndmask_b32 {v(self.OE+i)}, v9, v7, vcc")
            A(f"v_mov_b32 {v(self.QB+8*i+3)}, 0", f"v_mov_b32 {v(self.QB+8*i+5)}, 0")
        for r in range(4):
            A("v_lshl_add_u32 v7, v2, 2, " + str(r), f"v_cmp_gt_u32 {s(sM+2*r,2)}, v7, v1")
        A("v_mov_b32 v4, 0xffff", "v_mov_b32 v5, 0xffff0000")
        for h in range(2):
            A(f"v_cndmask_b32 v6, 0, v4, {s(sM+4*h,2)}", f"v_cndmask_b32 v7, 0, v5, {s(sM+4*h+2,2)}", f"v_or_b32 {v(self.MSK+h)}, v6, v7")
        A(f"v_cmp_eq_u32 {s(sM+8,2)}, 0, v2", "v_cmp_eq_u32 vcc, 1, v2", f"v_cndmask_b32 {v(self.GM)}, 0, -1, {s(sM+8,2)}",
          f"v_cndmask_b32 {v(self.GM+1)}, 0, -1, vcc")
        for r in range(4): A(f"v_mov_b32 {v(self.SEL+r)}, 0")
        A(f"s_mov_b32 {s(sT2)}, 0x3f80", f"v_writelane_b32 {v(self.SEL+3)}, {s(sT2)}, 32", f"v_writelane_b32 {v(self.SEL+3)}, {s(sT2)}, 52",
          f"v_writelane_b32 {v(self.SEL+3)}, 1.0, 33", f"v_writelane_b32 {v(self.SEL+3)}, 1.0, 53")
        A("v_and_b32 v4, 3, v0", "v_cmp_eq_u32 vcc, 2, v4")
        for r in range(4): A(f"v_cndmask_b32 {v(self.ONE+r)}, 0, 1.0, vcc")
        A(f"s_mul_i32 {s(sT2)}, {s(sWave)}, 3072", f"s_add_u32 {s(sT2)}, {s(sT2)}, {self.HALO}", f"v_lshl_add_u32 {v(self.HW)}, v0, 3, {s(sT2)}",
          f"s_mul_i32 {s(sT2)}, {s(sT1)}, 3072", f"s_add_u32 {s(sT2)}, {s(sT2)}, {self.HALO}", f"v_lshl_add_u32 {v(self.HR)}, v0, 3, {s(sT2)}")
        if self.c.fused:
            A(f"s_lshr_b32 {s(sT2)}, {s(sWave)}, 1", f"s_lshl_b32 {s(sT0)}, {s(sRb)}, 1", f"s_add_u32 {s(sT2)}, {s(sT2)}, {s(sT0)}",
              f"s_lshl_b32 {s(sT2)}, {s(sT2)}, 7", f"s_lshr_b32 {s(sT0)}, {s(sK)}, 8", f"s_add_u32 {s(sT2)}, {s(sT2)}, {s(sT0)}",
              f"s_add_u32 {s(sT2)}, {s(sT2)}, {FL_OFF}", f"v_mov_b32 v4, {s(sT2)}", "v_cmp_eq_u32 vcc, 0, v0",
              f"v_cndmask_b32 {v(self.FA)}, v9, v4, vcc")
            self.b2_setup()
    def b2_setup(self):
        A = self.A; WOV = self.WOV
        A(f"s_mul_i32 {s(sT0)}, {s(sIdx)}, 43", f"s_lshr_b32 {s(sT0)}, {s(sT0)}, 8", f"s_mul_i32 {s(sT1)}, {s(sT0)}, 6",
          f"s_sub_u32 {s(sCg2)}, {s(sIdx)}, {s(sT1)}", f"s_lshl_b32 {s(sT1)}, {s(sXc)}, 2", f"s_add_u32 {s(sT0)}, {s(sT0)}, {s(sT1)}",
          f"s_lshl_b32 {s(sT0)}, {s(sT0)}, 2", f"s_add_u32 {s(sIdx)}, {s(sT0)}, {s(sWave)}", f"s_mul_i32 {s(sCg2)}, {s(sCg2)}, 192")
        assert all((i*43) >> 8 == i // 6 for i in range(24))
        A(f"s_and_b32 {s(sT0)}, {s(sWave)}, 1", f"s_lshl_b32 {s(sT0)}, {s(sT0)}, 1",
          f"s_lshr_b32 {s(sT1)}, {s(sWave)}, 1")
        for n in range(3):
            A(f"v_add_u32 v3, {64*n}, v0")
            div(A, 4, 3, 12, 192)
            A("v_mul_u32_u24 v5, 12, v4", "v_sub_u32 v5, v3, v5",
              "v_lshrrev_b32 v6, 3, v4", "v_lshlrev_b32 v7, 1, v6", "v_xor_b32 v5, v5, v7",
              f"v_lshl_add_u32 v5, v5, 4, {s(sCg2)}",
              f"v_add_u32 v6, {s(sT0)}, v6",
              "v_bfe_u32 v7, v4, 2, 1", "v_and_b32 v4, 3, v4",
              "v_lshl_add_u32 v3, v6, 2, v4", "v_mad_u32_u24 v3, v7, 20, v3", f"s_mul_i32 {s(sT2)}, {s(sT1)}, 36",
              f"v_add_u32 v3, {s(sT2)}, v3", "v_mul_u32_u24 v3, 1152, v3", f"v_add_u32 {v(WOV+n)}, v3, v5",
              "v_lshl_add_u32 v3, v6, 1, v7", f"s_lshl_b32 {s(sT2)}, {s(sT1)}, 3", f"v_add_u32 v3, {s(sT2)}, v3",
              "v_mad_u32_u24 v3, v3, 36, v4", "v_add_u32 v3, 16, v3", "v_mul_u32_u24 v3, 1152, v3", f"v_add_u32 {v(WOV+3+n)}, v3, v5")
        if self.c.fused:
            A("v_and_b32 v3, 1, v2", f"s_lshl_b32 {s(sT2)}, {s(sIdx)}, 1", f"v_add_u32 v3, {s(sT2)}, v3")
            div(A, 4, 3, 11, 256)
            A("v_mul_u32_u24 v5, 11, v4", "v_sub_u32 v5, v3, v5", "v_cmp_le_u32 vcc, 5, v5", "v_cndmask_b32 v5, 0, 1, vcc",
              "v_lshl_add_u32 v4, v4, 1, v5", "v_lshlrev_b32 v4, 7, v4", "v_lshl_add_u32 v4, v1, 2, v4",
              f"v_add_u32 {v(self.PA)}, {FL_OFF}, v4")
    def wo_items(self):
        r = []
        for P in range(9):
            for n in range(3):
                pre = [f"s_add_u32 m0, {s(sCX)}, {self.WO + P*12288 + 1024*n}"]
                if n == 0: pre = [f"s_mov_b32 {s(sK+2)}, {P*72*1152 if P < 8 else 0}"] + pre
                r.append([pre, f"buffer_load_dwordx4 {v(self.WOV + n + (3 if P == 8 else 0))}, {s(SW2,4)}, {s(sK+2)} offen lds"])
        return r
    def b1_main(self):
        A = self.A; FR, AD, ACC = self.FR, self.AD, self.ACC
        def dma(n):
            if n < 3: return [f"s_add_u32 m0, {s(sLX)}, {1024*n}", f"buffer_load_dwordx4 {v(self.VX+n)}, {s(SX,4)}, {s(sOffX)} offen lds"]
            n -= 3
            return [f"s_add_u32 m0, {s(sLW)}, {1024*n}", f"buffer_load_dwordx4 {v(self.VW+n)}, {s(SW,4)}, {s(sOffW)} offen lds"]
        toff = [0, 40, 144, 184, None, 288, 328]
        def reads(st, ks):
            b = FR + 40*st
            def w(T):
                r = []
                for hh in range(2):
                    if T == 4: r.append(f"ds_read_b64_tr_b16 {v(b+12+4*T+2*hh,2)}, {v(AD+3)} offset:{ks*14336+hh*432}")
                    else: r.append(f"ds_read_b64_tr_b16 {v(b+12+4*T+2*hh,2)}, {v(AD+2)} offset:{ks*14336+hh*432+toff[T]}")
                return r
            x = [f"ds_read_b128 {v(b+4*i,4)}, {v(AD+ks)} offset:{2048*i}" for i in range(3)]
            return w(0) + x + sum((w(T) for T in range(1, 7)), [])
        def mfmas(st):
            b = FR + 40*st; r = []
            for T in range(7):
                for i in range(3):
                    d = v(ACC + 28*i + 4*T, 4); X = v(b+4*i, 4); W = v(b+12+4*T, 4)
                    r.append(f"{MF} {d}, {W}, {X}, {d}" if T < 5 else f"{MF} {d}, {X}, {W}, {d}")
            return r
        radv = [f"v_add_u32 {v(AD+k)}, {s(sSlotR)}, {v(AD+4+k)}" for k in range(4)]
        self.extra_vm = 0
        wo = self.wo_items() if self.c.fused else []
        tail = []
        for n in self.c.wo_split:
            tail.append(wo[:n]); wo = wo[n:]
        self.staged(10, dma, 40960, 128, 64*3456, reads, mfmas, radv, self.c.LcB, self.b1_mid, tail)
        return wo
    def attention(self, wo):
        A = self.A; ACC, QB = self.ACC, self.QB
        KB = self.FR; VB = KB + 24; VE = VB + 16; TM = VE + 8
        cv = lambda d, x: f"v_cvt_pk_bf16_f32 {v(d)}, {v(x)}, {v(x+1)}"
        c = 18 ** -0.5 * math.log2(math.e)
        import struct
        cbits = struct.unpack('<I', struct.pack('<f', c))[0]
        A(f"s_mov_b32 {s(sK+3)}, {cbits:#x}")
        def packkv(i):
            ac = ACC + 28*i; kb = KB + 6*(i+1)
            r = [cv(kb+3, ac+16), cv(kb+2, ac+18), cv(kb, ac+8), cv(kb+1, ac+10),
                 f"v_permlane16_swap_b32 {v(kb+3)}, {v(kb+2)}", cv(kb+4, ac+12), cv(kb+5, ac+14),
                 f"{MF} {v(ac+16,4)}, {v(kb,4)}, {v(self.SEL,4)}, {v(self.ONE,4)}"]
            for h in range(2):
                r += [cv(VB+8*h+2*(i+1), ac+20+4*h), cv(VB+8*h+2*(i+1)+1, ac+22+4*h)]
            return r
        def packq(i):
            ac = ACC + 28*i; q = QB + 8*i; kb = KB + 6*(i+1)
            return [cv(q, ac), cv(q+1, ac+2), cv(q+6, ac+4), cv(q+7, ac+6),
                    f"v_and_b32 {v(q+2)}, {v(self.GM)}, {v(kb+3)}", f"v_and_b32 {v(q+4)}, {v(self.GM+1)}, {v(kb+3)}"]
        def packve(i):
            ac = ACC + 28*i
            return [cv(VE+2*(i+1), ac+16), cv(VE+2*(i+1)+1, ac+18)]
        def smm(i):
            ac = ACC + 28*i; r = []
            for h in range(2):
                for pc in range(2):
                    r.append(f"{MF} {v(ac+8*h+4*pc,4)}, {v(KB+6*(i+pc)+2*h,4)}, {v(QB+8*i+4*h,4)}, {v(self.BIAS+4*i,4)}")
            return r
        def merge(i):
            ac = ACC + 28*i; r = []
            for h in range(2):
                b = ac + 8*h
                for k in range(4): r.append(f"v_cndmask_b32 {v(b+4+k)}, {v(b+4+k)}, {v(b+k)}, {s(sM+2*k,2)}")
                r += [f"v_max3_f32 {v(b)}, {v(b+4)}, {v(b+5)}, {v(b+6)}", f"v_max_f32 {v(b)}, {v(b)}, {v(b+7)}"]
            return r
        def red(i):
            x = ACC + 28*i; y = x + 8
            return [[f"v_permlane32_swap_b32 {v(x)}, {v(y)}"],
                    [f"v_max_f32 {v(x+1)}, {v(x)}, {v(y)}", f"v_max_f32 {v(y+1)}, {v(x)}, {v(y)}"],
                    [f"v_permlane16_swap_b32 {v(x+1)}, {v(y+1)}"],
                    [f"v_max_f32 {v(x+1)}, {v(x+1)}, {v(y+1)}"],
                    [f"v_mul_f32 {v(x)}, {s(sK+3)}, {v(x+1)}", f"v_mul_f32 {v(y)}, {s(sK+3)}, {v(x+1)}"],
                    [f"v_permlane32_swap_b32 {v(x)}, {v(y)}"]]
        def expo(i):
            ac = ACC + 28*i; r = []
            for h in range(2):
                b = ac + 8*h
                r += [f"v_fma_f32 {v(b+4+k)}, {v(b+4+k)}, {s(sK+3)}, -{v(b)}" for k in range(4)]
                r += [f"v_exp_f32 {v(b+4+k)}, {v(b+4+k)}" for k in range(4)]
            for h in range(2):
                b = ac + 8*h; p = ac + 20 + 4*h
                r += [cv(b, b+4), cv(b+1, b+6)]
                r += [f"v_and_b32 {v(p+k)}, {v(self.MSK+k)}, {v(b+k)}" for k in range(2)]
                r += [f"v_xor_b32 {v(p+2+k)}, {v(p+k)}, {v(b+k)}" for k in range(2)]
            return r
        def pv(i):
            ac = ACC + 28*i; r = []
            for h in range(2):
                p = v(ac+20+4*h, 4)
                r += [f"{MF} {v(ac+8*h+4,4)}, {v(VE+2*i,4)}, {p}, 0", f"{MF} {v(ac+8*h,4)}, {v(VB+8*h+2*i,4)}, {p}, 0"]
            return r
        def fin(i):
            ac = ACC + 28*i; r = []
            r += [f"v_rcp_f32 {v(ac+7)}, {v(ac+6)}", f"v_rcp_f32 {v(ac+15)}, {v(ac+14)}"]
            r += [f"v_cndmask_b32 {v(ac+4+k)}, {v(ac+12+k)}, {v(ac+4+k)}, {s(sM+8,2)}" for k in range(2)]
            for h in range(2):
                b = ac + 8*h
                r += [f"v_mul_f32 {v(b+k)}, {v(b+k)}, {v(b+7)}" for k in range(4)]
                r += [cv(ac+16+2*h, b), cv(ac+17+2*h, b+2)]
            r += [f"v_cndmask_b32 {v(ac+6)}, {v(ac+15)}, {v(ac+7)}, {s(sM+8,2)}",
                  f"buffer_store_dwordx4 {v(ac+16,4)}, {v(self.OA+i)}, {s(SWS,4)}, 0 offen" + self.sc(),
                  f"v_mul_f32 {v(ac+4)}, {v(ac+4)}, {v(ac+6)}", f"v_mul_f32 {v(ac+5)}, {v(ac+5)}, {v(ac+6)}", cv(ac+4, ac+4),
                  f"buffer_store_dword {v(ac+4)}, {v(self.OE+i)}, {s(SWS,4)}, 0 offen" + self.sc()]
            return r
        halo = [(KB+18, KB), (KB+20, KB+2), (KB+22, KB+4), (VB+6, VB), (VB+14, VB+8), (VE+6, VE)]
        S = []
        S += packkv(2) + packq(2) + packve(2)
        S += [f"ds_write_b64 {v(self.HW)}, {v(x,2)} offset:{512*k}" for k, (x, _) in enumerate(halo)]
        S += packkv(1) + packkv(0) + packq(1) + packve(1) + smm(2)
        S += ["s_waitcnt lgkmcnt(0)", "s_barrier"]
        S += [f"ds_read_b64 {v(y,2)}, {v(self.HR)} offset:{512*k}" for k, (_, y) in enumerate(halo)]
        S += packq(0) + packve(0) + smm(1) + merge(2) + smm(0) + merge(1) + merge(0)
        R = [red(i) for i in (2, 1, 0)]
        for k in range(6):
            for t in range(3): S += R[t][k]
        n1 = len(S)
        S += expo(2) + pv(2) + expo(1) + pv(1)
        n2 = len(S)
        S += expo(0) + fin(2) + pv(0) + fin(1) + fin(0)
        fill = []
        for it in wo: fill += [it[0], it[1]]
        if self.c.fused:
            fill = ["v_mov_b32 v3, 0", f"buffer_load_dword v4, v3, {s(SDBG,4)}, 0 offen sc1"] + fill
        A(weave(S, fill, span=n2))
    def go_check(self):
        A = self.A; l0 = self.lab("go"); l1 = self.lab("gok")
        A(f"s_mov_b32 {s(sCnt)}, {self.c.poll_max}", f"{l0}:", f"v_readfirstlane_b32 {s(sT0)}, v4", f"s_cmp_lg_u32 {s(sT0)}, 0",
          f"s_cbranch_scc1 {l1}", f"s_sub_u32 {s(sCnt)}, {s(sCnt)}, 1", f"s_cbranch_scc1 {l1}",
          f"buffer_load_dword v4, v3, {s(SDBG,4)}, 0 offen sc1", f"s_branch {l0}", f"{l1}:")
    def poll(self, pa):
        A = self.A; l0 = self.lab("poll"); l1 = self.lab("pok")
        A(f"s_mov_b32 {s(sCnt)}, {self.c.poll_max}", f"{l0}:", f"buffer_load_dword v4, {v(pa)}, {s(SWS,4)}, 0 offen sc1",
          f"s_sub_u32 {s(sCnt)}, {s(sCnt)}, 1", f"s_cbranch_scc1 {l1}",
          "v_cmp_eq_u32 vcc, 0, v4", "s_nop 4", f"s_cbranch_vccnz {l0}", f"{l1}:")
    def b2(self):
        A = self.A; c = self.c
        OF, AC2, WV, AW = 28, 100, 124, 20
        def wreg(j, T, hh):
            if j < 10: return a(24*j + 4*T + 2*hh, 2)
            if j < 15: return v(WV + 24*(j-10) + 4*T + 2*hh, 2)
            return a(24*(j-15) + 4*T + 2*hh, 2)
        def wop(j, T):
            if j < 10: return a(24*j + 4*T, 4)
            if j < 15: return v(WV + 24*(j-10) + 4*T, 4)
            return a(24*(j-15) + 4*T, 4)
        def rd(j):
            return [f"ds_read_b64_tr_b16 {wreg(j,T,hh)}, {v(AW + (T&1) + (2 if j >= 10 else 0))} offset:{(j%10)*6144 + hh*768 + 32*T}"
                    for T in range(6) for hh in range(2)]
        addr = ["v_bfe_u32 v5, v0, 2, 2", "v_lshl_add_u32 v5, v2, 3, v5", "v_mul_u32_u24 v5, 192, v5", "v_and_b32 v6, 3, v0",
                "v_lshl_add_u32 v5, v6, 3, v5", f"v_add_u32 v5, {self.WO}, v5", "v_and_b32 v6, 1, v2", "v_lshlrev_b32 v6, 5, v6",
                f"v_add_u32 {v(AW)}, v5, v6", f"v_sub_u32 {v(AW+1)}, v5, v6",
                f"v_add_u32 {v(AW+2)}, 61440, {v(AW)}", f"v_add_u32 {v(AW+3)}, 61440, {v(AW+1)}",
                f"s_mul_i32 {s(sT0)}, {s(sIdx)}, 18432", f"v_lshl_add_u32 v24, v0, 4, {s(sT0)}",
                f"s_lshl_b32 {s(sT0)}, {s(sIdx)}, 4", f"v_add_u32 v5, {s(sT0)}, v1", "v_and_b32 v7, 1023, v5", "v_lshrrev_b32 v5, 10, v5",
                "v_lshl_or_b32 v5, v7, 1, v5", "v_mul_u32_u24 v5, 2304, v5", "v_lshrrev_b32 v7, 1, v2", "v_lshl_add_u32 v6, v7, 4, v6",
                f"v_add3_u32 v25, v5, v6, {s(sCg2)}"]
        addr += [f"s_mov_b32 {s(sK+k)}, {4096*(k+1)}" for k in range(4)]
        old = [f"buffer_load_dwordx4 {v(OF+4*j,4)}, v24, {s(SWS,4)}, {s(sK+j//4-1) if j >= 4 else 0} offen offset:{1024*(j%4)}" + self.sc()
               for j in range(18)]
        allrd = sum((rd(j) for j in range(15)), [])
        if c.fused:
            A(addr)
            A("s_waitcnt vmcnt(6)", "s_barrier")
            self.go_check()
            A(allrd[:c.nb1])
            A("v_mov_b32 v5, 1", "s_waitcnt vmcnt(0)", f"buffer_store_dword v5, {v(self.FA)}, {s(SWS,4)}, 0 offen sc1")
            self.stamp(4)
            A(allrd[c.nb1:])
            self.poll(self.PA)
            self.stamp(5)
            A(old)
        else:
            for it in self.wo_items(): A(it)
            A(addr); A(old)
            A("s_waitcnt vmcnt(18)", "s_barrier")
            self.stamp(2)
            A(allrd)
        for j in range(18):
            m = [f"{MF} {v(AC2+4*T,4)}, {wop(j,T)}, {v(OF+4*j,4)}, {v(AC2+4*T,4) if j else 0}" for T in range(6)]
            A(weave(m, rd(j+14) if 1 <= j <= 3 else []))
        self.stamp(6)
        cv = lambda d, x: f"v_cvt_pk_bf16_f32 {v(d)}, {v(x)}, {v(x+1)}"
        for T in range(6): A(cv(OF+2*T, AC2+4*T), cv(OF+2*T+1, AC2+4*T+2))
        for P in range(3):
            A(f"v_permlane16_swap_b32 {v(OF+4*P)}, {v(OF+4*P+2)}", f"v_permlane16_swap_b32 {v(OF+4*P+1)}, {v(OF+4*P+3)}",
              f"buffer_store_dwordx4 {v(OF+4*P,4)}, v25, {s(SOUT,4)}, 0 offen offset:{1152+64*P}")

    aVX, aVM, aFR, aACC, aF, aUA, aSV, aFA, aPA, aWA = 10, 14, 28, 124, 204, 210, 211, 220, 221, 222
    aLW, aLM, aLR, aUR, aUD = 224, 225, 226, 227, 228
    def a1_setup(self):
        A = self.A
        A(f"s_sub_u32 {s(sIdx)}, {s(sIdx)}, 24", f"s_lshr_b32 {s(sRb)}, {s(sXc)}, 1", f"s_lshl_b32 {s(sRb)}, {s(sRb)}, 2",
          f"s_lshr_b32 {s(sT0)}, {s(sIdx)}, 1", f"s_add_u32 {s(sRb)}, {s(sRb)}, {s(sT0)}", f"s_and_b32 {s(sHg)}, {s(sXc)}, 1",
          f"s_lshl_b32 {s(sHg)}, {s(sHg)}, 1", f"s_and_b32 {s(sT0)}, {s(sIdx)}, 1", f"s_add_u32 {s(sHg)}, {s(sHg)}, {s(sT0)}")
        srd(A, SX, 2048*1152); srd(A, SW, 576*1152); srd(A, SW2, 2048*4096); srd(A, SW3, 2048*4096)
        A(f"s_lshl_b32 {s(sCX)}, {s(sWave)}, 12", f"s_mul_i32 {s(sCW)}, {s(sWave)}, 5120", f"s_add_u32 {s(sCW)}, {s(sCW)}, 16384")
        A("v_lshrrev_b32 v3, 3, v0", "v_and_b32 v4, 7, v0",
          f"s_lshl_b32 {s(sT0)}, {s(sRb)}, 3", f"s_lshl_b32 {s(sT1)}, {s(sWave)}, 1", f"s_add_u32 {s(sT0)}, {s(sT0)}, {s(sT1)}")
        for n in range(4):
            A(f"v_add_u32 v5, {8*(n&1)}, v3", "v_lshrrev_b32 v6, 1, v5", "v_xor_b32 v6, v6, v4",
              f"v_lshl_add_u32 v5, v5, 7, {s(sT0)}", f"v_add_u32 v5, {n>>1}, v5", "v_mul_u32_u24 v5, 1152, v5",
              f"v_lshl_add_u32 {v(self.aVX+n)}, v6, 4, v5")
        A(f"s_and_b32 {s(sT0)}, {s(sWave)}, 1", f"s_mul_i32 {s(sT0)}, {s(sT0)}, 40", f"s_mul_i32 {s(sT1)}, {s(sHg)}, 72")
        for n in range(5):
            A(f"v_add3_u32 v5, v3, {s(sT0)}, {8*n}", "v_bfe_u32 v6, v5, 1, 3", "v_xor_b32 v6, v6, v4",
              "v_lshrrev_b32 v7, 4, v5", "v_and_b32 v8, 3, v5", "v_lshl_add_u32 v7, v7, 2, v8", "v_bfe_u32 v8, v5, 2, 2",
              "v_mad_u32_u24 v7, v8, 18, v7", f"v_add_u32 v7, {s(sT1)}, v7", "v_mul_u32_u24 v7, 1152, v7",
              f"v_lshl_add_u32 {v(self.aVM+n)}, v6, 4, v7")
    def a1_mid(self):
        A = self.A; AD = self.AD; F = self.aF
        if self.c.fused:
            l = self.lab("nz")
            A(f"s_lshl_b32 {s(sT0)}, s2, 2", f"s_add_u32 {s(sT0)}, {s(sT0)}, {s(sWave)}", f"s_cmp_lg_u32 {s(sT0)}, 1023", f"s_cbranch_scc1 {l}")
            for k in range(4): A(f"v_mov_b32 {v(4+k)}, 0")
            A(f"v_lshlrev_b32 v3, 4, v0", f"v_add_u32 v3, {FL_OFF}, v3", "v_add_u32 v8, 4096, v3")
            for k in range(8): A(f"buffer_store_dwordx4 v[4:7], {'v3' if k < 4 else 'v8'}, {s(SWS,4)}, 0 offen offset:{1024*(k&3)} sc1")
            A("v_mov_b32 v9, 1", "v_lshlrev_b32 v3, 8, v0", "s_waitcnt vmcnt(0)", f"buffer_store_dword v9, v3, {s(SDBG,4)}, 0 offen sc1", "s_waitcnt vmcnt(0)", f"{l}:")
        A("v_lshrrev_b32 v4, 1, v1", "v_xor_b32 v4, v4, v2", "v_lshlrev_b32 v4, 4, v4", "v_lshl_add_u32 v4, v1, 7, v4",
          f"v_add_u32 {v(AD+4)}, {s(sCX)}, v4", f"v_xor_b32 {v(AD+5)}, 64, {v(AD+4)}",
          f"v_add_u32 {v(AD+6)}, 16384, v4", f"v_xor_b32 {v(AD+7)}, 64, {v(AD+6)}")
        for k in range(4): A(f"v_mov_b32 {v(AD+k)}, {v(AD+4+k)}")
        for r in range(80): A(f"v_mov_b32 {v(self.aACC+r)}, 0")
        for p in range(2):
            for k in range(2):
                A(f"v_lshl_add_u32 v3, v2, 2, {2*p+k}", "v_mul_u32_u24 v3, v3, v1", "v_and_b32 v3, 15, v3", "v_cvt_f32_u32 v3, v3",
                  "v_mul_f32 v3, 0x3d800000, v3", f"v_cos_f32 {v(4+k)}, v3", f"v_sin_f32 {v(6+k)}, v3")
            A(f"v_cvt_pk_bf16_f32 {v(F+p)}, v4, v5", f"v_cvt_pk_bf16_f32 {v(F+2+p)}, v6, v7", f"v_xor_b32 {v(F+4+p)}, 0x80008000, {v(F+p)}")
        A(f"s_lshr_b32 {s(sT0)}, {s(sRb)}, 2", f"s_lshl_b32 {s(sT0)}, {s(sT0)}, 4", f"s_lshl_b32 {s(sT1)}, {s(sWave)}, 2",
          f"s_add_u32 {s(sT0)}, {s(sT0)}, {s(sT1)}", f"s_and_b32 {s(sT1)}, {s(sRb)}, 3", f"s_add_u32 {s(sT0)}, {s(sT0)}, {s(sT1)}",
          f"s_mul_i32 {s(sT0)}, {s(sT0)}, 640", f"s_mul_i32 {s(sT1)}, {s(sHg)}, 40960", f"s_add_u32 {s(sT0)}, {s(sT0)}, {s(sT1)}",
          f"s_add_u32 {s(sT0)}, {s(sT0)}, {U_OFF}", "v_mul_u32_u24 v3, 655360, v2", "v_lshl_add_u32 v3, v1, 3, v3",
          f"v_add_u32 {v(self.aUA)}, {s(sT0)}, v3")
        for r in range(1, 4): A(f"s_mov_b32 {s(sK+r)}, {163840*r}")
        if self.c.fused:
            A(f"s_lshl_b32 {s(sT0)}, {s(sHg)}, 9", f"s_lshr_b32 {s(sT1)}, {s(sRb)}, 2", f"s_lshl_b32 {s(sT1)}, {s(sT1)}, 7",
              f"s_add_u32 {s(sT0)}, {s(sT0)}, {s(sT1)}", f"s_and_b32 {s(sT1)}, {s(sRb)}, 3", f"s_lshl_b32 {s(sT1)}, {s(sT1)}, 2",
              f"s_add_u32 {s(sT1)}, {s(sT1)}, {s(sWave)}", f"s_lshl_b32 {s(sT1)}, {s(sT1)}, 2", f"s_add_u32 {s(sT0)}, {s(sT0)}, {s(sT1)}",
              f"s_add_u32 {s(sT0)}, {s(sT0)}, {FL_OFF+AFL}", f"v_mov_b32 v4, {s(sT0)}", f"v_mov_b32 v9, {OOB}", "v_cmp_eq_u32 vcc, 0, v0",
              f"v_cndmask_b32 {v(self.aFA)}, v9, v4, vcc")
            self.a2_setup()
    def a2_setup(self):
        A = self.A
        A(f"s_lshl_b32 {s(sV0)}, {s(sXc)}, 1", f"s_lshr_b32 {s(sT0)}, {s(sIdx)}, 2", f"s_add_u32 {s(sV0)}, {s(sV0)}, {s(sT0)}",
          f"s_and_b32 {s(sCg2)}, {s(sIdx)}, 3")
        A(f"s_lshl_b32 {s(sT0)}, {s(sWave)}, 9", f"s_add_u32 {s(sT0)}, {s(sT0)}, {s(sV0)}",
          f"v_lshl_add_u32 v3, v1, 4, {s(sT0)}", "v_lshlrev_b32 v3, 12, v3", f"v_lshl_add_u32 {v(self.aWA)}, v2, 4, v3",
          f"v_add_u32 {v(self.aWA+1)}, {256*4096}, {v(self.aWA)}")
        A(f"s_mul_i32 {s(sT1)}, {s(sCg2)}, 144", f"s_sub_u32 {s(sT2)}, 1008, {s(sT1)}")
        for n in range(9):
            A(f"v_add_u32 v3, {64*n}, v0")
            div(A, 4, 3, 9, 576)
            A("v_mul_u32_u24 v5, 9, v4", "v_sub_u32 v5, v3, v5", "v_and_b32 v6, 31, v4", f"v_lshl_add_u32 v6, v6, 4, {s(sT0)}",
              "v_sub_u32 v7, 0, v6", "v_and_b32 v7, 2047, v7", "v_cmp_le_u32 vcc, 32, v4", f"v_mov_b32 v8, {s(sT1)}", f"v_mov_b32 v3, {s(sT2)}",
              "v_cndmask_b32 v6, v6, v7, vcc", "v_cndmask_b32 v8, v8, v3, vcc", "v_mul_u32_u24 v6, 2304, v6",
              "v_lshl_add_u32 v5, v5, 4, v8", f"v_add_u32 {v(self.aSV+n)}, v5, v6")
        A(f"s_mul_i32 {s(sT1)}, {s(sWave)}, 9216", f"s_add_u32 {s(sT1)}, {s(sT1)}, 40960",
          "v_mul_u32_u24 v3, 144, v1", "v_mul_u32_u24 v4, 36, v2", f"v_add3_u32 {v(self.aLW)}, v3, v4, {s(sT1)}",
          f"v_sub_u32 v4, {4608+108}, v4", f"v_add3_u32 {v(self.aLM)}, v3, v4, {s(sT1)}", f"v_lshl_add_u32 {v(self.aLR)}, v0, 4, {s(sT1)}",
          "v_mul_u32_u24 v3, 640, v2", f"v_lshl_add_u32 {v(self.aUR)}, v1, 3, v3")
        A(f"s_mul_i32 {s(sT1)}, {s(sV0)}, 163840", f"s_mul_i32 {s(sT2)}, {s(sCg2)}, 40960", f"s_add_u32 {s(sT1)}, {s(sT1)}, {s(sT2)}",
          f"s_lshl_b32 {s(sT2)}, {s(sWave)}, 10", f"s_add_u32 {s(sT1)}, {s(sT1)}, {s(sT2)}", f"s_add_u32 {s(sT1)}, {s(sT1)}, {U_OFF}",
          f"v_lshl_add_u32 {v(self.aUD)}, v0, 4, {s(sT1)}")
        if self.c.fused:
            A(f"s_lshl_b32 {s(sT1)}, {s(sCg2)}, 9", f"s_add_u32 {s(sT1)}, {s(sT1)}, {FL_OFF+AFL}", "v_lshlrev_b32 v3, 7, v2",
              "v_lshl_add_u32 v3, v1, 2, v3", f"v_add_u32 {v(self.aPA)}, {s(sT1)}, v3")
    def tw_items(self):
        return [[[], f"buffer_load_dwordx4 {a(32*tt+8*l+4*im,4)}, {v(self.aWA+tt)}, {s(SW3 if im else SW2,4)}, 0 offen offset:{64*l}"]
                for tt in range(2) for im in range(2) for l in range(4)]
    def a1_main(self):
        A = self.A; FR, AD, ACC = self.aFR, self.AD, self.aACC
        def dma(n):
            if n < 4: return [f"s_add_u32 m0, {s(sLX)}, {1024*n}", f"buffer_load_dwordx4 {v(self.aVX+n)}, {s(SX,4)}, {s(sOffX)} offen lds"]
            n -= 4
            return [f"s_add_u32 m0, {s(sLW)}, {1024*n}", f"buffer_load_dwordx4 {v(self.aVM+n)}, {s(SW,4)}, {s(sOffW)} offen lds"]
        def reads(st, ks):
            b = FR + 48*st
            x = [f"ds_read_b128 {v(b+4*u,4)}, {v(AD+ks)} offset:{2048*u}" for u in range(2)]
            m = [f"ds_read_b128 {v(b+8+4*T,4)}, {v(AD+2+ks)} offset:{2048*T}" for T in range(10)]
            return m[:1] + x + m[1:]
        def mfmas(st):
            b = FR + 48*st; r = []
            for T in range(10):
                for u in range(2):
                    d = v(ACC + 40*u + 8*(T % 5) + 4*(T // 5), 4)
                    r.append(f"{MF} {d}, {v(b+4*u,4)}, {v(b+8+4*T,4)}, {d}")
            return r
        radv = [f"v_add_u32 {v(AD+k)}, {s(sSlotR)}, {v(AD+4+k)}" for k in range(4)]
        self.extra_vm = 0
        tw = self.tw_items() if self.c.fused else []
        tail = [tw[0:4], tw[4:8], tw[8:12], tw[12:16]]
        self.staged(9, dma, 36864, 128, 128, reads, mfmas, radv, self.c.LcA, self.a1_mid, tail)
        cv = lambda d, x, y: f"v_cvt_pk_bf16_f32 {v(d)}, {v(x)}, {v(y)}"
        if self.c.fused:
            A("v_mov_b32 v3, 0", f"buffer_load_dword v4, v3, {s(SDBG,4)}, 0 offen sc1")
        def pk(et):
            return [cv(FR+8*et+4*u+k, ACC+40*u+8*et+2*k, ACC+40*u+8*et+2*k+1) for u in range(2) for k in range(4)]
        def mm(et):
            return [f"{MF} {v(ACC+40*u+8*et+4*im,4)}, {v(self.aF+2*im,4)}, {v(FR+8*et+4*u,4)}, 0" for u in range(2) for im in range(2)]
        def st(et):
            r = []
            for k in range(4):
                d = FR + 48 + 8*et + 2*k
                r += [cv(d, ACC+8*et+k, ACC+40+8*et+k), cv(d+1, ACC+8*et+4+k, ACC+44+8*et+k),
                      f"buffer_store_dwordx2 {v(d,2)}, {v(self.aUA)}, {s(SWS,4)}, {s(sK+k) if k else 0} offen offset:{128*et}" + self.sc()]
            return r
        A(pk(0), pk(1), mm(0), pk(2), mm(1), pk(3), st(0), mm(2), pk(4), st(1), mm(3), st(2), mm(4), st(3), st(4))
    def a2(self):
        A = self.A; c = self.c
        W, ACC, UF = 28, 124, 164
        perm = [0, 4, 2, 6, 1, 5, 3, 7]
        mv = [f"v_accvgpr_read_b32 {v(W+8*b+k)}, {a(8*b+perm[k])}" for b in range(8) for k in range(8)]
        dm = []
        for n in range(10):
            dm += [f"s_mov_b32 {s(sT1)}, {4096*n}", f"s_add_u32 m0, {s(sT0)}, {4096*n}",
                   f"buffer_load_dwordx4 {v(self.aUD)}, {s(SWS,4)}, {s(sT1)} offen{self.sc()} lds"]
        if c.fused:
            A("s_waitcnt vmcnt(20)")
            self.go_check()
            A(mv)
            A("v_mov_b32 v5, 1", "s_waitcnt vmcnt(0)", f"buffer_store_dword v5, {v(self.aFA)}, {s(SWS,4)}, 0 offen sc1")
            self.stamp(4)
            A("s_barrier")
            self.poll(self.aPA)
            self.stamp(5)
            A(f"s_lshl_b32 {s(sT0)}, {s(sWave)}, 10")
            A(dm)
        else:
            for it in self.tw_items(): A(it)
            A(f"s_lshl_b32 {s(sT0)}, {s(sWave)}, 10")
            A(dm); A(mv)
        A("s_waitcnt vmcnt(0)", "s_barrier")
        def rd(k):
            l, h = k >> 1, k & 1
            return [f"ds_read_b64 {v(UF+20*(k&1)+4*et+2*p,2)}, {v(self.aUR)} offset:{(16*l+4*(h+2*p))*640+128*et}" for et in range(5) for p in range(2)]
        A(rd(0))
        for k in range(8):
            m = [f"{MF} {v(ACC+20*tt+4*et,4)}, {v(UF+20*(k&1)+4*et,4)}, {v(W+32*tt+4*k,4)}, {v(ACC+20*tt+4*et,4) if k else 0}"
                 for et in range(5) for tt in range(2)]
            A(weave(m, rd(k+1) if k < 7 else [], span=7))
        self.stamp(6)
        cv = lambda d, x, y: f"v_cvt_pk_bf16_f32 {v(d)}, {v(x)}, {v(y)}"
        n = 0
        for var in range(2):
            for tt in range(2):
                b = ACC + 20*tt
                for k in range(9):
                    d = W + n; n += 1
                    A(cv(d, b+2*k, b+2*k+1) if var == 0 else cv(d, b+18-2*k, b+17-2*k),
                      f"ds_write_b32 {v(self.aLM if var else self.aLW)}, {v(d)} offset:{2304*tt+4*k}")
        A("s_waitcnt lgkmcnt(0)")
        for n in range(9): A(f"ds_read_b128 {v(W+40+4*n,4)}, {v(self.aLR)} offset:{1024*n}")
        for n in range(9): A(f"buffer_store_dwordx4 {v(W+40+4*n,4)}, {v(self.aSV+n)}, {s(SOUT,4)}, 0 offen")

    def a_ptrs(self):
        A = self.A
        A(f"s_cmp_ge_u32 {s(sWave)}, 2", "s_waitcnt lgkmcnt(0)", f"s_cselect_b64 {s(SW,2)}, s[12:13], s[10:11]")
        self.ptrs([(SX, 4), (SW2, 6), (SW3, 8)])

    def build(self):
        A = self.A; c = self.c
        k1 = KN + "_kernel"; k2 = "second_kernel"
        A('.amdgcn_target "amdgcn-amd-amdhsa--gfx950"', ".text")
        self.entry(k1, "L_A", "L_end")
        self.b1_setup()
        A("s_waitcnt lgkmcnt(0)"); self.ptrs([(SX, 14), (SW, 16), (SW2, 18)])
        wo = self.b1_main()
        self.stamp(3)
        self.attention(wo)
        if c.fused: self.b2()
        self.finish_role("L_end")
        A("L_A:")
        self.a1_setup(); self.a_ptrs()
        self.a1_main()
        self.stamp(3)
        if c.fused: self.a2()
        self.finish_role("L_end")
        A("L_end:", "s_endpgm")
        names = [k1]
        if not c.fused:
            names.append(k2)
            self.entry(k2, "L_A2", "L_end2")
            srd(A, SW2, 576*1152)
            A(f"s_mul_i32 {s(sCX)}, {s(sWave)}, 3072")
            self.b2_setup()
            A("s_waitcnt lgkmcnt(0)"); self.ptrs([(SW2, 18)])
            self.b2()
            self.finish_role("L_end2", 1)
            A("L_A2:")
            A(f"s_sub_u32 {s(sIdx)}, {s(sIdx)}, 24")
            srd(A, SW2, 2048*4096); srd(A, SW3, 2048*4096)
            self.a2_setup()
            A("s_waitcnt lgkmcnt(0)"); self.ptrs([(SW2, 6), (SW3, 8)])
            self.a2()
            self.finish_role("L_end2", 1)
            A("L_end2:", "s_endpgm")
        body = A.finish(names, verbose=True)
        hdr = "; FNet 2-D DFT (two-step, mirrored) + sliding dilated attention, generated by my own script\n"
        if c.fused: hdr += "; @launch grid=(256,1,1) block=(256,1,1) lds=163840\n"
        else:
            for n in names: hdr += f"; @launch kernel={n} grid=(256,1,1) block=(256,1,1) lds=163840\n"
        tail = '.section .rodata,"a"\n'
        for n in names:
            tail += f""".p2align 6
.amdhsa_kernel {n}
  .amdhsa_next_free_vgpr 512
  .amdhsa_next_free_sgpr 102
  .amdhsa_accum_offset 256
  .amdhsa_group_segment_fixed_size 0
  .amdhsa_kernarg_size 88
  .amdhsa_user_sgpr_count 2
  .amdhsa_user_sgpr_kernarg_segment_ptr 1
  .amdhsa_system_sgpr_workgroup_id_x 1
.end_amdhsa_kernel
"""
        return hdr + body + tail

def make(path, **kw):
    c = Cfg()
    for k, x in kw.items():
        assert hasattr(c, k), k
        setattr(c, k, x)
    open(path, 'w').write(Gen(c).build())

if __name__ == '__main__':
    kw = {}
    for x in sys.argv[2:]:
        k, val = x.split('='); kw[k] = eval(val)
    make(sys.argv[1], **kw)
```

```python
import sys, math
from asmgen import *

KN = "concat_heads__spectral_fnet__sliding_local_dilated__prompt"
MF = "v_mfma_f32_16x16x32_bf16"
O_OFF, U_OFF, FL_OFF, ST_OFF, WS_SIZE = 0, 0x280000, 0x500000, 0x600000, 0x700000
AFL = 6144
OOB = 0x80000000
SX, SW, SW2, SW3, SWS, SOUT, SDBG = 28, 32, 36, 40, 44, 48, 52
sWave, sXc, sIdx, sRb, sHg, sT0, sT1, sT2 = 56, 57, 58, 59, 60, 61, 62, 63
sLX, sLW, sSlotW, sSlotR, sOffX, sOffW, sCnt, sCX, sCW = 64, 65, 66, 67, 68, 69, 26, 27, 3
sM = 70
sK = 96
sCg2, sV0 = 100, 101

class Cfg:
    fused = True; stamps = False; LcB = 20; LcA = 18; wo_split = (3, 4, 4, 4); nb1 = 120
    poll_max = 1 << 16
    x_nodma = False; x_nomfma = False; x_nord = False; cluster = False; probe = None

def div(A, d, src, k, n):
    m = -(-65536 // k)
    assert all((x * m) >> 16 == x // k for x in range(n)), (k, n)
    A(f"v_mul_u32_u24 {v(d)}, {m}, {v(src)}", f"v_lshrrev_b32 {v(d)}, 16, {v(d)}")

def srd(A, r, nbytes):
    A(f"s_mov_b32 {s(r+2)}, {nbytes}", f"s_mov_b32 {s(r+3)}, 0x20000")

class Gen:
    def __init__(self, c):
        self.c = c; self.A = Asm(); self.uid = 0
    def lab(self, n):
        self.uid += 1; return f"L_{n}_{self.uid}"
    def stamp(self, k):
        if self.c.stamps: self.A(f"s_memrealtime {s(80+2*k,2)}")
    def sc(self): return " sc1" if self.c.fused else ""

    def entry(self, name, lA, lEnd):
        A = self.A
        A(f".globl {name}", ".p2align 8", f".type {name},@function", f"{name}:")
        A("s_cmp_ge_u32 s2, 256", f"s_cbranch_scc1 {lEnd}")
        A("s_load_dwordx16 s[4:19], s[0:1], 0", "s_load_dwordx4 s[20:23], s[0:1], 64", "s_load_dwordx2 s[24:25], s[0:1], 80")
        if self.c.stamps:
            for k in range(8): A(f"s_mov_b32 {s(80+2*k)}, 0")
        self.stamp(0)
        A("v_lshrrev_b32 v1, 6, v0", "v_and_b32 v0, 63, v0", f"v_readfirstlane_b32 {s(sWave)}, v1")
        A(f"s_and_b32 {s(sXc)}, s2, 7", f"s_lshr_b32 {s(sIdx)}, s2, 3")
        A("v_and_b32 v1, 15, v0", "v_lshrrev_b32 v2, 4, v0")
        srd(A, SWS, WS_SIZE); srd(A, SOUT, 2048*2304); srd(A, SDBG, 256)
        A(f"s_cmp_ge_u32 {s(sIdx)}, 24", f"s_cbranch_scc1 {lA}")
    def ptrs(self, m):
        A = self.A
        for r, p in m: A(f"s_mov_b64 {s(r,2)}, {s(p,2)}")
        A(f"s_mov_b64 {s(SWS,2)}, s[24:25]", f"s_mov_b64 {s(SOUT,2)}, s[20:21]", f"s_mov_b64 {s(SDBG,2)}, s[22:23]")
    def finish_role(self, lEnd, kidx=0):
        A = self.A
        if self.c.stamps:
            A("s_waitcnt vmcnt(0)")
            self.stamp(7)
            A("s_waitcnt lgkmcnt(0)")
            if self.c.probe:
                k, wg = self.c.probe; l0 = self.lab("pr"); l1 = self.lab("prx")
                A(f"s_lshl_b32 {s(sT0)}, s2, 2", f"s_add_u32 {s(sT0)}, {s(sT0)}, {s(sWave)}", f"s_cmp_lg_u32 {s(sT0)}, {4*wg}", f"s_cbranch_scc1 {l1}",
                  f"s_sub_u32 {s(sT0)}, {s(80+2*k)}, s80", f"s_mul_i32 {s(sT0)}, {s(sT0)}, 10", f"s_add_u32 {s(sT0)}, {s(sT0)}, 4000",
                  f"s_min_u32 {s(sT0)}, {s(sT0)}, 100000",
                  f"{l0}:", "s_memrealtime s[4:5]", "s_waitcnt lgkmcnt(0)", f"s_sub_u32 {s(sT1)}, s4, s80", f"s_cmp_lt_u32 {s(sT1)}, {s(sT0)}",
                  f"s_cbranch_scc1 {l0}", f"{l1}:")
            for k in range(8): A(f"v_mov_b32 {v(4+k)}, {s(80+2*k)}")
            A(f"s_lshl_b32 {s(sT0)}, s2, 2", f"s_add_u32 {s(sT0)}, {s(sT0)}, {s(sWave)}", f"s_lshl_b32 {s(sT0)}, {s(sT0)}, 5",
              f"s_add_u32 {s(sT0)}, {s(sT0)}, {ST_OFF + kidx*0x10000}", f"v_mov_b32 v3, {s(sT0)}", f"v_mov_b32 v12, {OOB}",
              "v_cmp_eq_u32 vcc, 0, v0", "v_cndmask_b32 v3, v12, v3, vcc",
              f"buffer_store_dwordx4 v[4:7], v3, {s(SWS,4)}, 0 offen", f"buffer_store_dwordx4 v[8:11], v3, {s(SWS,4)}, 0 offen offset:16")
        A("s_endpgm")

    def staged(self, nd, dma, slot, stepX, stepW, reads, mfmas, radv, Lc, mid_setup, tail):
        A = self.A
        NS = 9; tot = NS * nd
        wadv = [f"s_add_u32 {s(sSlotW)}, {s(sSlotW)}, {slot}", f"s_cmp_eq_u32 {s(sSlotW)}, {4*slot}",
                f"s_cselect_b32 {s(sSlotW)}, 0, {s(sSlotW)}", f"s_add_u32 {s(sLX)}, {s(sSlotW)}, {s(sCX)}",
                f"s_add_u32 {s(sLW)}, {s(sSlotW)}, {s(sCW)}", f"s_add_u32 {s(sOffX)}, {s(sOffX)}, {stepX}",
                f"s_add_u32 {s(sOffW)}, {s(sOffW)}, {stepW}"]
        sadv = [f"s_add_u32 {s(sSlotR)}, {s(sSlotR)}, {slot}", f"s_cmp_eq_u32 {s(sSlotR)}, {4*slot}",
                f"s_cselect_b32 {s(sSlotR)}, 0, {s(sSlotR)}"]
        def items(g0, g1):
            r = []
            for g in range(g0, min(g1, tot)):
                it = list(dma(g % nd))
                if g % nd == nd - 1: it.append(wadv)
                r.append(it)
            return r
        def mix(rd, its):
            out = []; rd = list(rd)
            per = max(1, len(rd) // max(1, len(its))) if its else 0
            if self.c.cluster:
                for it in its:
                    pre = it[0] if isinstance(it[0], list) else [it[0]]
                    rd.append(pre + [it[1]] + sum(it[2:], []))
                return rd
            for it in its:
                pre = it[0] if isinstance(it[0], list) else [it[0]]
                out += pre
                if rd: out.append(rd.pop(0))
                out.append(it[1])
                for _ in range(per - 1):
                    if rd: out.append(rd.pop(0))
                for e in it[2:]: out += e
            return out + rd
        A(f"s_mov_b32 {s(sSlotW)}, 0", f"s_mov_b32 {s(sSlotR)}, 0", f"s_mov_b32 {s(sOffX)}, 0", f"s_mov_b32 {s(sOffW)}, 0",
          f"s_mov_b32 {s(sLX)}, {s(sCX)}", f"s_mov_b32 {s(sLW)}, {s(sCW)}")
        for it in items(0, Lc): A(it)
        self.stamp(1)
        mid_setup()
        extra0 = self.extra_vm
        assert extra0 == 0
        A(f"s_waitcnt vmcnt({Lc-nd})", "s_barrier")
        self.stamp(2)
        A(reads(0, 0))
        h0 = (nd + 1) // 2
        nloop = (tot - Lc) // nd
        def stage(st, issued, last, t0, t1):
            i0 = items(issued, issued + h0); i1 = items(issued + h0, issued + nd)
            n0 = len(i0) + len(t0)
            m = mfmas(0)
            A(weave(m, mix(reads(1, 1), i0 + t0) + ([] if last else sadv), span=len(m) - 2))
            if not last:
                A(radv)
                w = min(issued, tot) + self.tail_cnt + n0 - nd * (st + 2)
                A(f"s_waitcnt vmcnt({max(w,0)})", "s_barrier")
            self.tail_cnt += len(t0) + len(t1)
            m = mfmas(1)
            A(weave(m, mix([] if last else reads(0, 0), i1 + t1), span=len(m) - 2))
        self.tail_cnt = 0
        if self.c.x_nodma:
            d0 = dma; dma = lambda n: [d0(n)[0], "s_nop 0"]
        if self.c.x_nomfma:
            m0_ = mfmas; mfmas = lambda st: ["s_nop 0"] * len(m0_(st))
        if self.c.x_nord:
            reads = lambda st, ks: []
        lp = self.lab("loop")
        A(f"s_mov_b32 {s(sCnt)}, {nloop}", f"{lp}:")
        stage(0, Lc, False, [], [])
        A(f"s_sub_u32 {s(sCnt)}, {s(sCnt)}, 1", f"s_cmp_lg_u32 {s(sCnt)}, 0", f"s_cbranch_scc1 {lp}")
        tl = [[] for _ in range(2 * (NS - nloop) - 4)] + tail
        for st in range(nloop, NS):
            k = 2 * (st - nloop)
            stage(st, Lc + st * nd, st == NS - 1, tl[k], tl[k + 1])

    VX, VW, AD, FR, ACC, QB, BIAS, SEL, ONE, MSK, GM, OA, OE, WOV = 10, 13, 20, 28, 108, 192, 216, 228, 232, 236, 238, 240, 243, 246
    HW, HR, FA, PA = 252, 253, 254, 255
    WO = 40960; HALO = 151552
    def b_ids(self):
        A = self.A
        A(f"s_lshr_b32 {s(sT0)}, {s(sXc)}, 1", f"s_mul_i32 {s(sRb)}, {s(sT0)}, 6", f"s_lshr_b32 {s(sT0)}, {s(sIdx)}, 2",
          f"s_add_u32 {s(sRb)}, {s(sRb)}, {s(sT0)}", f"s_and_b32 {s(sHg)}, {s(sXc)}, 1", f"s_lshl_b32 {s(sHg)}, {s(sHg)}, 2",
          f"s_and_b32 {s(sT0)}, {s(sIdx)}, 3", f"s_add_u32 {s(sHg)}, {s(sHg)}, {s(sT0)}",
          f"s_mul_i32 {s(sV0)}, {s(sRb)}, 88", f"s_sub_u32 {s(sV0)}, {s(sV0)}, 8")
    def b1_setup(self):
        A = self.A; VX, VW = self.VX, self.VW
        self.b_ids()
        srd(A, SX, 2048*1152); srd(A, SW, 576*3456); srd(A, SW2, 576*1152)
        A(f"s_mul_i32 {s(sCX)}, {s(sWave)}, 3072", f"s_mul_i32 {s(sCW)}, {s(sWave)}, 7168", f"s_add_u32 {s(sCW)}, {s(sCW)}, 12288")
        A(f"s_mul_i32 {s(sT0)}, {s(sWave)}, 24", "v_lshrrev_b32 v3, 3, v0", f"v_add_u32 v3, {s(sT0)}, v3", "v_and_b32 v4, 7, v0",
          f"v_mov_b32 v9, {OOB}")
        for n in range(3):
            A(f"v_add_u32 v5, {8*n}, v3", "v_bfe_u32 v6, v5, 1, 3", "v_xor_b32 v6, v6, v4", f"v_add_u32 v5, {s(sV0)}, v5",
              "v_and_b32 v7, 1023, v5", "v_lshrrev_b32 v8, 10, v5", "v_lshl_or_b32 v7, v7, 1, v8", "v_cmp_gt_u32 vcc, 2048, v5",
              "v_mul_u32_u24 v7, 1152, v7", "v_lshl_add_u32 v7, v6, 4, v7", f"v_cndmask_b32 {v(VX+n)}, v9, v7, vcc")
        A(f"s_mul_i32 {s(sT0)}, {s(sWave)}, {16*3456}", f"s_mul_i32 {s(sT1)}, {s(sHg)}, 144", f"s_add_u32 {s(sT0)}, {s(sT0)}, {s(sT1)}")
        for n in range(7):
            A(f"v_add_u32 v3, {64*n}, v0")
            div(A, 4, 3, 27, 448)
            A("v_mul_u32_u24 v5, 27, v4", "v_sub_u32 v5, v3, v5")
            div(A, 6, 5, 9, 27)
            A("v_mul_u32_u24 v6, 1008, v6", "v_lshl_add_u32 v5, v5, 4, v6",
              "v_bfe_u32 v6, v4, 1, 2", "v_and_b32 v7, 1, v4", "v_lshl_or_b32 v6, v7, 2, v6", "v_and_or_b32 v6, v4, 8, v6",
              "v_mul_u32_u24 v6, 3456, v6", f"v_add3_u32 {v(VW+n)}, v5, v6, {s(sT0)}")
            if n == 6: A("v_cmp_gt_u32 vcc, 48, v0", f"v_cndmask_b32 {v(VW+n)}, v9, {v(VW+n)}, vcc")
    def b1_mid(self):
        A = self.A; AD = self.AD
        A(f"s_lshr_b32 {s(sT0)}, {s(sWave)}, 1", f"s_mul_i32 {s(sT0)}, {s(sT0)}, 48",
          f"s_and_b32 {s(sT1)}, {s(sWave)}, 1")
        A(f"v_add_u32 v3, {s(sT0)}, v1", "v_lshrrev_b32 v4, 1, v1", "v_xor_b32 v4, v4, v2", "v_lshlrev_b32 v4, 4, v4",
          f"v_lshl_add_u32 {v(AD+4)}, v3, 7, v4", f"v_xor_b32 {v(AD+5)}, 64, {v(AD+4)}")
        A("v_lshrrev_b32 v4, 1, v2", "v_mul_u32_u24 v4, 7168, v4", "v_and_b32 v5, 1, v2", "v_bfe_u32 v6, v0, 2, 2",
          "v_lshl_add_u32 v5, v5, 2, v6", "v_mul_u32_u24 v5, 864, v5", f"s_mul_i32 {s(sT2)}, {s(sT1)}, 72",
          f"s_add_u32 {s(sT2)}, {s(sT2)}, 12288", f"v_add3_u32 v4, v4, v5, {s(sT2)}", "v_and_b32 v5, 3, v0",
          f"v_lshl_add_u32 {v(AD+6)}, v5, 3, v4", "v_cmp_eq_u32 vcc, 3, v5", "v_cndmask_b32 v5, v5, 1, vcc",
          "v_mul_u32_u24 v5, 144, v5", f"v_add3_u32 {v(AD+7)}, v4, v5, 32")
        for k in range(4): A(f"v_mov_b32 {v(AD+k)}, {v(AD+4+k)}")
        for r in range(84): A(f"v_mov_b32 {v(self.ACC+r)}, 0")
        A("v_mov_b32 v8, 0xf149f2ca", f"v_mov_b32 v9, {OOB}")
        A(f"s_lshl_b32 {s(sT2)}, {s(sHg)}, 1", f"s_add_u32 {s(sT2)}, {s(sT2)}, {s(sT1)}", f"s_lshl_b32 {s(sK)}, {s(sT2)}, 10",
          f"s_lshl_b32 {s(sK+1)}, {s(sHg)}, 8", f"s_add_u32 {s(sK+1)}, {s(sK+1)}, 16384", f"s_lshl_b32 {s(sT2)}, {s(sT1)}, 3",
          f"s_add_u32 {s(sK+1)}, {s(sK+1)}, {s(sT2)}")
        for i in range(3):
            A(f"v_add_u32 v4, {16*i}, v3", f"v_add_u32 v5, {s(sV0)}, v4",
              "v_and_b32 v6, 1023, v5", "v_min_u32 v6, 7, v6")
            for r in range(4):
                A("v_lshlrev_b32 v7, 2, v2", "v_sub_u32 v7, v1, v7", f"v_subrev_u32 v7, {r}, v7", "v_and_b32 v7, 15, v7",
                  "v_cmp_le_u32 vcc, v7, v6", f"v_cndmask_b32 {v(self.BIAS+4*i+r)}, v8, 0, vcc")
            A("v_lshrrev_b32 v6, 4, v5", "v_mul_u32_u24 v6, 18432, v6", "v_and_b32 v7, 15, v5", "v_lshl_add_u32 v6, v7, 4, v6",
              "v_cmp_le_u32 vcc, 8, v4", f"v_cmp_gt_u32 {s(sM,2)}, 2048, v5" if False else f"v_mov_b32 v7, 2048",
              f"v_cmp_gt_u32 {s(sM,2)}, v7, v5", f"s_and_b64 vcc, vcc, {s(sM,2)}",
              "v_lshl_add_u32 v7, v2, 8, v6", f"v_add_u32 v7, {s(sK)}, v7", f"v_cndmask_b32 {v(self.OA+i)}, v9, v7, vcc",
              f"v_cmp_gt_u32 {s(sM,2)}, 2, v2", f"s_and_b64 vcc, vcc, {s(sM,2)}",
              "v_lshl_add_u32 v7, v2, 2, v6", f"v_add_u32 v7, {s(sK+1)}, v7", f"v_cndmask_b32 {v(self.OE+i)}, v9, v7, vcc")
            A(f"v_mov_b32 {v(self.QB+8*i+3)}, 0", f"v_mov_b32 {v(self.QB+8*i+5)}, 0")
        for r in range(4):
            A("v_lshl_add_u32 v7, v2, 2, " + str(r), f"v_cmp_gt_u32 {s(sM+2*r,2)}, v7, v1")
        A("v_mov_b32 v4, 0xffff", "v_mov_b32 v5, 0xffff0000")
        for h in range(2):
            A(f"v_cndmask_b32 v6, 0, v4, {s(sM+4*h,2)}", f"v_cndmask_b32 v7, 0, v5, {s(sM+4*h+2,2)}", f"v_or_b32 {v(self.MSK+h)}, v6, v7")
        A(f"v_cmp_eq_u32 {s(sM+8,2)}, 0, v2", "v_cmp_eq_u32 vcc, 1, v2", f"v_cndmask_b32 {v(self.GM)}, 0, -1, {s(sM+8,2)}",
          f"v_cndmask_b32 {v(self.GM+1)}, 0, -1, vcc")
        for r in range(4): A(f"v_mov_b32 {v(self.SEL+r)}, 0")
        A(f"s_mov_b32 {s(sT2)}, 0x3f80", f"v_writelane_b32 {v(self.SEL+3)}, {s(sT2)}, 32", f"v_writelane_b32 {v(self.SEL+3)}, {s(sT2)}, 52",
          f"v_writelane_b32 {v(self.SEL+3)}, 1.0, 33", f"v_writelane_b32 {v(self.SEL+3)}, 1.0, 53")
        A("v_and_b32 v4, 3, v0", "v_cmp_eq_u32 vcc, 2, v4")
        for r in range(4): A(f"v_cndmask_b32 {v(self.ONE+r)}, 0, 1.0, vcc")
        A(f"s_mul_i32 {s(sT2)}, {s(sWave)}, 3072", f"s_add_u32 {s(sT2)}, {s(sT2)}, {self.HALO}", f"v_lshl_add_u32 {v(self.HW)}, v0, 3, {s(sT2)}",
          f"s_mul_i32 {s(sT2)}, {s(sT1)}, 3072", f"s_add_u32 {s(sT2)}, {s(sT2)}, {self.HALO}", f"v_lshl_add_u32 {v(self.HR)}, v0, 3, {s(sT2)}")
        if self.c.fused:
            A(f"s_lshr_b32 {s(sT2)}, {s(sWave)}, 1", f"s_lshl_b32 {s(sT0)}, {s(sRb)}, 1", f"s_add_u32 {s(sT2)}, {s(sT2)}, {s(sT0)}",
              f"s_lshl_b32 {s(sT2)}, {s(sT2)}, 7", f"s_lshr_b32 {s(sT0)}, {s(sK)}, 8", f"s_add_u32 {s(sT2)}, {s(sT2)}, {s(sT0)}",
              f"s_add_u32 {s(sT2)}, {s(sT2)}, {FL_OFF}", f"v_mov_b32 v4, {s(sT2)}", "v_cmp_eq_u32 vcc, 0, v0",
              f"v_cndmask_b32 {v(self.FA)}, v9, v4, vcc")
            self.b2_setup()
    def b2_setup(self):
        A = self.A; WOV = self.WOV
        A(f"s_mul_i32 {s(sT0)}, {s(sIdx)}, 43", f"s_lshr_b32 {s(sT0)}, {s(sT0)}, 8", f"s_mul_i32 {s(sT1)}, {s(sT0)}, 6",
          f"s_sub_u32 {s(sCg2)}, {s(sIdx)}, {s(sT1)}", f"s_lshl_b32 {s(sT1)}, {s(sXc)}, 2", f"s_add_u32 {s(sT0)}, {s(sT0)}, {s(sT1)}",
          f"s_lshl_b32 {s(sT0)}, {s(sT0)}, 2", f"s_add_u32 {s(sIdx)}, {s(sT0)}, {s(sWave)}", f"s_mul_i32 {s(sCg2)}, {s(sCg2)}, 192")
        assert all((i*43) >> 8 == i // 6 for i in range(24))
        A(f"s_and_b32 {s(sT0)}, {s(sWave)}, 1", f"s_lshl_b32 {s(sT0)}, {s(sT0)}, 1",
          f"s_lshr_b32 {s(sT1)}, {s(sWave)}, 1")
        for n in range(3):
            A(f"v_add_u32 v3, {64*n}, v0")
            div(A, 4, 3, 12, 192)
            A("v_mul_u32_u24 v5, 12, v4", "v_sub_u32 v5, v3, v5",
              "v_lshrrev_b32 v6, 3, v4", "v_lshlrev_b32 v7, 1, v6", "v_xor_b32 v5, v5, v7",
              f"v_lshl_add_u32 v5, v5, 4, {s(sCg2)}",
              f"v_add_u32 v6, {s(sT0)}, v6",
              "v_bfe_u32 v7, v4, 2, 1", "v_and_b32 v4, 3, v4",
              "v_lshl_add_u32 v3, v6, 2, v4", "v_mad_u32_u24 v3, v7, 20, v3", f"s_mul_i32 {s(sT2)}, {s(sT1)}, 36",
              f"v_add_u32 v3, {s(sT2)}, v3", "v_mul_u32_u24 v3, 1152, v3", f"v_add_u32 {v(WOV+n)}, v3, v5",
              "v_lshl_add_u32 v3, v6, 1, v7", f"s_lshl_b32 {s(sT2)}, {s(sT1)}, 3", f"v_add_u32 v3, {s(sT2)}, v3",
              "v_mad_u32_u24 v3, v3, 36, v4", "v_add_u32 v3, 16, v3", "v_mul_u32_u24 v3, 1152, v3", f"v_add_u32 {v(WOV+3+n)}, v3, v5")
        if self.c.fused:
            A("v_and_b32 v3, 1, v2", f"s_lshl_b32 {s(sT2)}, {s(sIdx)}, 1", f"v_add_u32 v3, {s(sT2)}, v3")
            div(A, 4, 3, 11, 256)
            A("v_mul_u32_u24 v5, 11, v4", "v_sub_u32 v5, v3, v5", "v_cmp_le_u32 vcc, 5, v5", "v_cndmask_b32 v5, 0, 1, vcc",
              "v_lshl_add_u32 v4, v4, 1, v5", "v_lshlrev_b32 v4, 7, v4", "v_lshl_add_u32 v4, v1, 2, v4",
              f"v_add_u32 {v(self.PA)}, {FL_OFF}, v4")
    def wo_items(self):
        r = []
        for P in range(9):
            for n in range(3):
                pre = [f"s_add_u32 m0, {s(sCX)}, {self.WO + P*12288 + 1024*n}"]
                if n == 0: pre = [f"s_mov_b32 {s(sK+2)}, {P*72*1152 if P < 8 else 0}"] + pre
                r.append([pre, f"buffer_load_dwordx4 {v(self.WOV + n + (3 if P == 8 else 0))}, {s(SW2,4)}, {s(sK+2)} offen lds"])
        return r
    def b1_main(self):
        A = self.A; FR, AD, ACC = self.FR, self.AD, self.ACC
        def dma(n):
            if n < 3: return [f"s_add_u32 m0, {s(sLX)}, {1024*n}", f"buffer_load_dwordx4 {v(self.VX+n)}, {s(SX,4)}, {s(sOffX)} offen lds"]
            n -= 3
            return [f"s_add_u32 m0, {s(sLW)}, {1024*n}", f"buffer_load_dwordx4 {v(self.VW+n)}, {s(SW,4)}, {s(sOffW)} offen lds"]
        toff = [0, 40, 144, 184, None, 288, 328]
        def reads(st, ks):
            b = FR + 40*st
            def w(T):
                r = []
                for hh in range(2):
                    if T == 4: r.append(f"ds_read_b64_tr_b16 {v(b+12+4*T+2*hh,2)}, {v(AD+3)} offset:{ks*14336+hh*432}")
                    else: r.append(f"ds_read_b64_tr_b16 {v(b+12+4*T+2*hh,2)}, {v(AD+2)} offset:{ks*14336+hh*432+toff[T]}")
                return r
            x = [f"ds_read_b128 {v(b+4*i,4)}, {v(AD+ks)} offset:{2048*i}" for i in range(3)]
            return w(0) + x + sum((w(T) for T in range(1, 7)), [])
        def mfmas(st):
            b = FR + 40*st; r = []
            for T in range(7):
                for i in range(3):
                    d = v(ACC + 28*i + 4*T, 4); X = v(b+4*i, 4); W = v(b+12+4*T, 4)
                    r.append(f"{MF} {d}, {W}, {X}, {d}" if T < 5 else f"{MF} {d}, {X}, {W}, {d}")
            return r
        radv = [f"v_add_u32 {v(AD+k)}, {s(sSlotR)}, {v(AD+4+k)}" for k in range(4)]
        self.extra_vm = 0
        wo = self.wo_items() if self.c.fused else []
        tail = []
        for n in self.c.wo_split:
            tail.append(wo[:n]); wo = wo[n:]
        self.staged(10, dma, 40960, 128, 64*3456, reads, mfmas, radv, self.c.LcB, self.b1_mid, tail)
        return wo
    def attention(self, wo):
        A = self.A; ACC, QB = self.ACC, self.QB
        KB = self.FR; VB = KB + 24; VE = VB + 16; TM = VE + 8
        cv = lambda d, x: f"v_cvt_pk_bf16_f32 {v(d)}, {v(x)}, {v(x+1)}"
        c = 18 ** -0.5 * math.log2(math.e)
        import struct
        cbits = struct.unpack('<I', struct.pack('<f', c))[0]
        A(f"s_mov_b32 {s(sK+3)}, {cbits:#x}")
        def packkv(i):
            ac = ACC + 28*i; kb = KB + 6*(i+1)
            r = [cv(kb+3, ac+16), cv(kb+2, ac+18), cv(kb, ac+8), cv(kb+1, ac+10),
                 f"v_permlane16_swap_b32 {v(kb+3)}, {v(kb+2)}", cv(kb+4, ac+12), cv(kb+5, ac+14),
                 f"{MF} {v(ac+16,4)}, {v(kb,4)}, {v(self.SEL,4)}, {v(self.ONE,4)}"]
            for h in range(2):
                r += [cv(VB+8*h+2*(i+1), ac+20+4*h), cv(VB+8*h+2*(i+1)+1, ac+22+4*h)]
            return r
        def packq(i):
            ac = ACC + 28*i; q = QB + 8*i; kb = KB + 6*(i+1)
            return [cv(q, ac), cv(q+1, ac+2), cv(q+6, ac+4), cv(q+7, ac+6),
                    f"v_and_b32 {v(q+2)}, {v(self.GM)}, {v(kb+3)}", f"v_and_b32 {v(q+4)}, {v(self.GM+1)}, {v(kb+3)}"]
        def packve(i):
            ac = ACC + 28*i
            return [cv(VE+2*(i+1), ac+16), cv(VE+2*(i+1)+1, ac+18)]
        def smm(i):
            ac = ACC + 28*i; r = []
            for h in range(2):
                for pc in range(2):
                    r.append(f"{MF} {v(ac+8*h+4*pc,4)}, {v(KB+6*(i+pc)+2*h,4)}, {v(QB+8*i+4*h,4)}, {v(self.BIAS+4*i,4)}")
            return r
        def merge(i):
            ac = ACC + 28*i; r = []
            for h in range(2):
                b = ac + 8*h
                for k in range(4): r.append(f"v_cndmask_b32 {v(b+4+k)}, {v(b+4+k)}, {v(b+k)}, {s(sM+2*k,2)}")
                r += [f"v_max3_f32 {v(b)}, {v(b+4)}, {v(b+5)}, {v(b+6)}", f"v_max_f32 {v(b)}, {v(b)}, {v(b+7)}"]
            return r
        def red(i):
            x = ACC + 28*i; y = x + 8
            return [[f"v_permlane32_swap_b32 {v(x)}, {v(y)}"],
                    [f"v_max_f32 {v(x+1)}, {v(x)}, {v(y)}", f"v_max_f32 {v(y+1)}, {v(x)}, {v(y)}"],
                    [f"v_permlane16_swap_b32 {v(x+1)}, {v(y+1)}"],
                    [f"v_max_f32 {v(x+1)}, {v(x+1)}, {v(y+1)}"],
                    [f"v_mul_f32 {v(x)}, {s(sK+3)}, {v(x+1)}", f"v_mul_f32 {v(y)}, {s(sK+3)}, {v(x+1)}"],
                    [f"v_permlane32_swap_b32 {v(x)}, {v(y)}"]]
        def expo(i):
            ac = ACC + 28*i; r = []
            for h in range(2):
                b = ac + 8*h
                r += [f"v_fma_f32 {v(b+4+k)}, {v(b+4+k)}, {s(sK+3)}, -{v(b)}" for k in range(4)]
                r += [f"v_exp_f32 {v(b+4+k)}, {v(b+4+k)}" for k in range(4)]
            for h in range(2):
                b = ac + 8*h; p = ac + 20 + 4*h
                r += [cv(b, b+4), cv(b+1, b+6)]
                r += [f"v_and_b32 {v(p+k)}, {v(self.MSK+k)}, {v(b+k)}" for k in range(2)]
                r += [f"v_xor_b32 {v(p+2+k)}, {v(p+k)}, {v(b+k)}" for k in range(2)]
            return r
        def pv(i):
            ac = ACC + 28*i; r = []
            for h in range(2):
                p = v(ac+20+4*h, 4)
                r += [f"{MF} {v(ac+8*h+4,4)}, {v(VE+2*i,4)}, {p}, 0", f"{MF} {v(ac+8*h,4)}, {v(VB+8*h+2*i,4)}, {p}, 0"]
            return r
        def fin(i):
            ac = ACC + 28*i; r = []
            r += [f"v_rcp_f32 {v(ac+7)}, {v(ac+6)}", f"v_rcp_f32 {v(ac+15)}, {v(ac+14)}"]
            r += [f"v_cndmask_b32 {v(ac+4+k)}, {v(ac+12+k)}, {v(ac+4+k)}, {s(sM+8,2)}" for k in range(2)]
            for h in range(2):
                b = ac + 8*h
                r += [f"v_mul_f32 {v(b+k)}, {v(b+k)}, {v(b+7)}" for k in range(4)]
                r += [cv(ac+16+2*h, b), cv(ac+17+2*h, b+2)]
            r += [f"v_cndmask_b32 {v(ac+6)}, {v(ac+15)}, {v(ac+7)}, {s(sM+8,2)}",
                  f"buffer_store_dwordx4 {v(ac+16,4)}, {v(self.OA+i)}, {s(SWS,4)}, 0 offen" + self.sc(),
                  f"v_mul_f32 {v(ac+4)}, {v(ac+4)}, {v(ac+6)}", f"v_mul_f32 {v(ac+5)}, {v(ac+5)}, {v(ac+6)}", cv(ac+4, ac+4),
                  f"buffer_store_dword {v(ac+4)}, {v(self.OE+i)}, {s(SWS,4)}, 0 offen" + self.sc()]
            return r
        halo = [(KB+18, KB), (KB+20, KB+2), (KB+22, KB+4), (VB+6, VB), (VB+14, VB+8), (VE+6, VE)]
        S = []
        S += packkv(2) + packq(2) + packve(2)
        S += [f"ds_write_b64 {v(self.HW)}, {v(x,2)} offset:{512*k}" for k, (x, _) in enumerate(halo)]
        S += packkv(1) + packkv(0) + packq(1) + packve(1) + smm(2)
        S += ["s_waitcnt lgkmcnt(0)", "s_barrier"]
        S += [f"ds_read_b64 {v(y,2)}, {v(self.HR)} offset:{512*k}" for k, (_, y) in enumerate(halo)]
        S += packq(0) + packve(0) + smm(1) + merge(2) + smm(0) + merge(1) + merge(0)
        R = [red(i) for i in (2, 1, 0)]
        for k in range(6):
            for t in range(3): S += R[t][k]
        n1 = len(S)
        S += expo(2) + pv(2) + expo(1) + pv(1)
        n2 = len(S)
        S += expo(0) + fin(2) + pv(0) + fin(1) + fin(0)
        fill = []
        for it in wo: fill += [it[0], it[1]]
        if self.c.fused:
            fill = ["v_mov_b32 v3, 0", f"buffer_load_dword v4, v3, {s(SDBG,4)}, 0 offen sc1"] + fill
        A(weave(S, fill, span=n2))
    def go_check(self):
        A = self.A; l0 = self.lab("go"); l1 = self.lab("gok")
        A(f"s_mov_b32 {s(sCnt)}, {self.c.poll_max}", f"{l0}:", f"v_readfirstlane_b32 {s(sT0)}, v4", f"s_cmp_lg_u32 {s(sT0)}, 0",
          f"s_cbranch_scc1 {l1}", f"s_sub_u32 {s(sCnt)}, {s(sCnt)}, 1", f"s_cbranch_scc1 {l1}",
          f"buffer_load_dword v4, v3, {s(SDBG,4)}, 0 offen sc1", f"s_branch {l0}", f"{l1}:")
    def poll(self, pa):
        A = self.A; l0 = self.lab("poll"); l1 = self.lab("pok")
        A(f"s_mov_b32 {s(sCnt)}, {self.c.poll_max}", f"{l0}:", f"buffer_load_dword v4, {v(pa)}, {s(SWS,4)}, 0 offen sc1",
          f"s_sub_u32 {s(sCnt)}, {s(sCnt)}, 1", f"s_cbranch_scc1 {l1}",
          "v_cmp_eq_u32 vcc, 0, v4", "s_nop 4", f"s_cbranch_vccnz {l0}", f"{l1}:")
    def b2(self):
        A = self.A; c = self.c
        OF, AC2, WV, AW = 28, 100, 124, 20
        def wreg(j, T, hh):
            if j < 10: return a(24*j + 4*T + 2*hh, 2)
            if j < 15: return v(WV + 24*(j-10) + 4*T + 2*hh, 2)
            return a(24*(j-15) + 4*T + 2*hh, 2)
        def wop(j, T):
            if j < 10: return a(24*j + 4*T, 4)
            if j < 15: return v(WV + 24*(j-10) + 4*T, 4)
            return a(24*(j-15) + 4*T, 4)
        def rd(j):
            return [f"ds_read_b64_tr_b16 {wreg(j,T,hh)}, {v(AW + (T&1) + (2 if j >= 10 else 0))} offset:{(j%10)*6144 + hh*768 + 32*T}"
                    for T in range(6) for hh in range(2)]
        addr = ["v_bfe_u32 v5, v0, 2, 2", "v_lshl_add_u32 v5, v2, 3, v5", "v_mul_u32_u24 v5, 192, v5", "v_and_b32 v6, 3, v0",
                "v_lshl_add_u32 v5, v6, 3, v5", f"v_add_u32 v5, {self.WO}, v5", "v_and_b32 v6, 1, v2", "v_lshlrev_b32 v6, 5, v6",
                f"v_add_u32 {v(AW)}, v5, v6", f"v_sub_u32 {v(AW+1)}, v5, v6",
                f"v_add_u32 {v(AW+2)}, 61440, {v(AW)}", f"v_add_u32 {v(AW+3)}, 61440, {v(AW+1)}",
                f"s_mul_i32 {s(sT0)}, {s(sIdx)}, 18432", f"v_lshl_add_u32 v24, v0, 4, {s(sT0)}",
                f"s_lshl_b32 {s(sT0)}, {s(sIdx)}, 4", f"v_add_u32 v5, {s(sT0)}, v1", "v_and_b32 v7, 1023, v5", "v_lshrrev_b32 v5, 10, v5",
                "v_lshl_or_b32 v5, v7, 1, v5", "v_mul_u32_u24 v5, 2304, v5", "v_lshrrev_b32 v7, 1, v2", "v_lshl_add_u32 v6, v7, 4, v6",
                f"v_add3_u32 v25, v5, v6, {s(sCg2)}"]
        addr += [f"s_mov_b32 {s(sK+k)}, {4096*(k+1)}" for k in range(4)]
        old = [f"buffer_load_dwordx4 {v(OF+4*j,4)}, v24, {s(SWS,4)}, {s(sK+j//4-1) if j >= 4 else 0} offen offset:{1024*(j%4)}" + self.sc()
               for j in range(18)]
        allrd = sum((rd(j) for j in range(15)), [])
        if c.fused:
            A(addr)
            A("s_waitcnt vmcnt(6)", "s_barrier")
            self.go_check()
            A(allrd[:c.nb1])
            A("v_mov_b32 v5, 1", "s_waitcnt vmcnt(0)", f"buffer_store_dword v5, {v(self.FA)}, {s(SWS,4)}, 0 offen sc1")
            self.stamp(4)
            A(allrd[c.nb1:])
            self.poll(self.PA)
            self.stamp(5)
            A(old)
        else:
            for it in self.wo_items(): A(it)
            A(addr); A(old)
            A("s_waitcnt vmcnt(18)", "s_barrier")
            self.stamp(2)
            A(allrd)
        for j in range(18):
            m = [f"{MF} {v(AC2+4*T,4)}, {wop(j,T)}, {v(OF+4*j,4)}, {v(AC2+4*T,4) if j else 0}" for T in range(6)]
            A(weave(m, rd(j+14) if 1 <= j <= 3 else []))
        self.stamp(6)
        cv = lambda d, x: f"v_cvt_pk_bf16_f32 {v(d)}, {v(x)}, {v(x+1)}"
        for T in range(6): A(cv(OF+2*T, AC2+4*T), cv(OF+2*T+1, AC2+4*T+2))
        for P in range(3):
            A(f"v_permlane16_swap_b32 {v(OF+4*P)}, {v(OF+4*P+2)}", f"v_permlane16_swap_b32 {v(OF+4*P+1)}, {v(OF+4*P+3)}",
              f"buffer_store_dwordx4 {v(OF+4*P,4)}, v25, {s(SOUT,4)}, 0 offen offset:{1152+64*P}")

    aVX, aVM, aFR, aACC, aF, aUA, aSV, aFA, aPA, aWA = 10, 14, 28, 124, 204, 210, 211, 220, 221, 222
    aLW, aLM, aLR, aUR, aUD = 224, 225, 226, 227, 228
    def a1_setup(self):
        A = self.A
        A(f"s_sub_u32 {s(sIdx)}, {s(sIdx)}, 24", f"s_lshr_b32 {s(sRb)}, {s(sXc)}, 1", f"s_lshl_b32 {s(sRb)}, {s(sRb)}, 2",
          f"s_lshr_b32 {s(sT0)}, {s(sIdx)}, 1", f"s_add_u32 {s(sRb)}, {s(sRb)}, {s(sT0)}", f"s_and_b32 {s(sHg)}, {s(sXc)}, 1",
          f"s_lshl_b32 {s(sHg)}, {s(sHg)}, 1", f"s_and_b32 {s(sT0)}, {s(sIdx)}, 1", f"s_add_u32 {s(sHg)}, {s(sHg)}, {s(sT0)}")
        srd(A, SX, 2048*1152); srd(A, SW, 576*1152); srd(A, SW2, 2048*4096); srd(A, SW3, 2048*4096)
        A(f"s_lshl_b32 {s(sCX)}, {s(sWave)}, 12", f"s_mul_i32 {s(sCW)}, {s(sWave)}, 5120", f"s_add_u32 {s(sCW)}, {s(sCW)}, 16384")
        A("v_lshrrev_b32 v3, 3, v0", "v_and_b32 v4, 7, v0",
          f"s_lshl_b32 {s(sT0)}, {s(sRb)}, 3", f"s_lshl_b32 {s(sT1)}, {s(sWave)}, 1", f"s_add_u32 {s(sT0)}, {s(sT0)}, {s(sT1)}")
        for n in range(4):
            A(f"v_add_u32 v5, {8*(n&1)}, v3", "v_lshrrev_b32 v6, 1, v5", "v_xor_b32 v6, v6, v4",
              f"v_lshl_add_u32 v5, v5, 7, {s(sT0)}", f"v_add_u32 v5, {n>>1}, v5", "v_mul_u32_u24 v5, 1152, v5",
              f"v_lshl_add_u32 {v(self.aVX+n)}, v6, 4, v5")
        A(f"s_and_b32 {s(sT0)}, {s(sWave)}, 1", f"s_mul_i32 {s(sT0)}, {s(sT0)}, 40", f"s_mul_i32 {s(sT1)}, {s(sHg)}, 72")
        for n in range(5):
            A(f"v_add3_u32 v5, v3, {s(sT0)}, {8*n}", "v_bfe_u32 v6, v5, 1, 3", "v_xor_b32 v6, v6, v4",
              "v_lshrrev_b32 v7, 4, v5", "v_and_b32 v8, 3, v5", "v_lshl_add_u32 v7, v7, 2, v8", "v_bfe_u32 v8, v5, 2, 2",
              "v_mad_u32_u24 v7, v8, 18, v7", f"v_add_u32 v7, {s(sT1)}, v7", "v_mul_u32_u24 v7, 1152, v7",
              f"v_lshl_add_u32 {v(self.aVM+n)}, v6, 4, v7")
    def a1_mid(self):
        A = self.A; AD = self.AD; F = self.aF
        if self.c.fused:
            l = self.lab("nz")
            A(f"s_lshl_b32 {s(sT0)}, s2, 2", f"s_add_u32 {s(sT0)}, {s(sT0)}, {s(sWave)}", f"s_cmp_lg_u32 {s(sT0)}, 1023", f"s_cbranch_scc1 {l}")
            for k in range(4): A(f"v_mov_b32 {v(4+k)}, 0")
            A(f"v_lshlrev_b32 v3, 4, v0", f"v_add_u32 v3, {FL_OFF}, v3", "v_add_u32 v8, 4096, v3")
            for k in range(8): A(f"buffer_store_dwordx4 v[4:7], {'v3' if k < 4 else 'v8'}, {s(SWS,4)}, 0 offen offset:{1024*(k&3)} sc1")
            A("v_mov_b32 v9, 1", "v_lshlrev_b32 v3, 8, v0", "s_waitcnt vmcnt(0)", f"buffer_store_dword v9, v3, {s(SDBG,4)}, 0 offen sc1", "s_waitcnt vmcnt(0)", f"{l}:")
        A("v_lshrrev_b32 v4, 1, v1", "v_xor_b32 v4, v4, v2", "v_lshlrev_b32 v4, 4, v4", "v_lshl_add_u32 v4, v1, 7, v4",
          f"v_add_u32 {v(AD+4)}, {s(sCX)}, v4", f"v_xor_b32 {v(AD+5)}, 64, {v(AD+4)}",
          f"v_add_u32 {v(AD+6)}, 16384, v4", f"v_xor_b32 {v(AD+7)}, 64, {v(AD+6)}")
        for k in range(4): A(f"v_mov_b32 {v(AD+k)}, {v(AD+4+k)}")
        for r in range(80): A(f"v_mov_b32 {v(self.aACC+r)}, 0")
        for p in range(2):
            for k in range(2):
                A(f"v_lshl_add_u32 v3, v2, 2, {2*p+k}", "v_mul_u32_u24 v3, v3, v1", "v_and_b32 v3, 15, v3", "v_cvt_f32_u32 v3, v3",
                  "v_mul_f32 v3, 0x3d800000, v3", f"v_cos_f32 {v(4+k)}, v3", f"v_sin_f32 {v(6+k)}, v3")
            A(f"v_cvt_pk_bf16_f32 {v(F+p)}, v4, v5", f"v_cvt_pk_bf16_f32 {v(F+2+p)}, v6, v7", f"v_xor_b32 {v(F+4+p)}, 0x80008000, {v(F+p)}")
        A(f"s_lshr_b32 {s(sT0)}, {s(sRb)}, 2", f"s_lshl_b32 {s(sT0)}, {s(sT0)}, 4", f"s_lshl_b32 {s(sT1)}, {s(sWave)}, 2",
          f"s_add_u32 {s(sT0)}, {s(sT0)}, {s(sT1)}", f"s_and_b32 {s(sT1)}, {s(sRb)}, 3", f"s_add_u32 {s(sT0)}, {s(sT0)}, {s(sT1)}",
          f"s_mul_i32 {s(sT0)}, {s(sT0)}, 640", f"s_mul_i32 {s(sT1)}, {s(sHg)}, 40960", f"s_add_u32 {s(sT0)}, {s(sT0)}, {s(sT1)}",
          f"s_add_u32 {s(sT0)}, {s(sT0)}, {U_OFF}", "v_mul_u32_u24 v3, 655360, v2", "v_lshl_add_u32 v3, v1, 3, v3",
          f"v_add_u32 {v(self.aUA)}, {s(sT0)}, v3")
        for r in range(1, 4): A(f"s_mov_b32 {s(sK+r)}, {163840*r}")
        if self.c.fused:
            A(f"s_lshl_b32 {s(sT0)}, {s(sHg)}, 9", f"s_lshr_b32 {s(sT1)}, {s(sRb)}, 2", f"s_lshl_b32 {s(sT1)}, {s(sT1)}, 7",
              f"s_add_u32 {s(sT0)}, {s(sT0)}, {s(sT1)}", f"s_and_b32 {s(sT1)}, {s(sRb)}, 3", f"s_lshl_b32 {s(sT1)}, {s(sT1)}, 2",
              f"s_add_u32 {s(sT1)}, {s(sT1)}, {s(sWave)}", f"s_lshl_b32 {s(sT1)}, {s(sT1)}, 2", f"s_add_u32 {s(sT0)}, {s(sT0)}, {s(sT1)}",
              f"s_add_u32 {s(sT0)}, {s(sT0)}, {FL_OFF+AFL}", f"v_mov_b32 v4, {s(sT0)}", f"v_mov_b32 v9, {OOB}", "v_cmp_eq_u32 vcc, 0, v0",
              f"v_cndmask_b32 {v(self.aFA)}, v9, v4, vcc")
            self.a2_setup()
    def a2_setup(self):
        A = self.A
        A(f"s_lshl_b32 {s(sV0)}, {s(sXc)}, 1", f"s_lshr_b32 {s(sT0)}, {s(sIdx)}, 2", f"s_add_u32 {s(sV0)}, {s(sV0)}, {s(sT0)}",
          f"s_and_b32 {s(sCg2)}, {s(sIdx)}, 3")
        A(f"s_lshl_b32 {s(sT0)}, {s(sWave)}, 9", f"s_add_u32 {s(sT0)}, {s(sT0)}, {s(sV0)}",
          f"v_lshl_add_u32 v3, v1, 4, {s(sT0)}", "v_lshlrev_b32 v3, 12, v3", f"v_lshl_add_u32 {v(self.aWA)}, v2, 4, v3",
          f"v_add_u32 {v(self.aWA+1)}, {256*4096}, {v(self.aWA)}")
        A(f"s_mul_i32 {s(sT1)}, {s(sCg2)}, 144", f"s_sub_u32 {s(sT2)}, 1008, {s(sT1)}")
        for n in range(9):
            A(f"v_add_u32 v3, {64*n}, v0")
            div(A, 4, 3, 9, 576)
            A("v_mul_u32_u24 v5, 9, v4", "v_sub_u32 v5, v3, v5", "v_and_b32 v6, 31, v4", f"v_lshl_add_u32 v6, v6, 4, {s(sT0)}",
              "v_sub_u32 v7, 0, v6", "v_and_b32 v7, 2047, v7", "v_cmp_le_u32 vcc, 32, v4", f"v_mov_b32 v8, {s(sT1)}", f"v_mov_b32 v3, {s(sT2)}",
              "v_cndmask_b32 v6, v6, v7, vcc", "v_cndmask_b32 v8, v8, v3, vcc", "v_mul_u32_u24 v6, 2304, v6",
              "v_lshl_add_u32 v5, v5, 4, v8", f"v_add_u32 {v(self.aSV+n)}, v5, v6")
        A(f"s_mul_i32 {s(sT1)}, {s(sWave)}, 9216", f"s_add_u32 {s(sT1)}, {s(sT1)}, 40960",
          "v_mul_u32_u24 v3, 144, v1", "v_mul_u32_u24 v4, 36, v2", f"v_add3_u32 {v(self.aLW)}, v3, v4, {s(sT1)}",
          f"v_sub_u32 v4, {4608+108}, v4", f"v_add3_u32 {v(self.aLM)}, v3, v4, {s(sT1)}", f"v_lshl_add_u32 {v(self.aLR)}, v0, 4, {s(sT1)}",
          "v_mul_u32_u24 v3, 640, v2", f"v_lshl_add_u32 {v(self.aUR)}, v1, 3, v3")
        A(f"s_mul_i32 {s(sT1)}, {s(sV0)}, 163840", f"s_mul_i32 {s(sT2)}, {s(sCg2)}, 40960", f"s_add_u32 {s(sT1)}, {s(sT1)}, {s(sT2)}",
          f"s_lshl_b32 {s(sT2)}, {s(sWave)}, 10", f"s_add_u32 {s(sT1)}, {s(sT1)}, {s(sT2)}", f"s_add_u32 {s(sT1)}, {s(sT1)}, {U_OFF}",
          f"v_lshl_add_u32 {v(self.aUD)}, v0, 4, {s(sT1)}")
        if self.c.fused:
            A(f"s_lshl_b32 {s(sT1)}, {s(sCg2)}, 9", f"s_add_u32 {s(sT1)}, {s(sT1)}, {FL_OFF+AFL}", "v_lshlrev_b32 v3, 7, v2",
              "v_lshl_add_u32 v3, v1, 2, v3", f"v_add_u32 {v(self.aPA)}, {s(sT1)}, v3")
    def tw_items(self):
        return [[[], f"buffer_load_dwordx4 {a(32*tt+8*l+4*im,4)}, {v(self.aWA+tt)}, {s(SW3 if im else SW2,4)}, 0 offen offset:{64*l}"]
                for tt in range(2) for im in range(2) for l in range(4)]
    def a1_main(self):
        A = self.A; FR, AD, ACC = self.aFR, self.AD, self.aACC
        def dma(n):
            if n < 4: return [f"s_add_u32 m0, {s(sLX)}, {1024*n}", f"buffer_load_dwordx4 {v(self.aVX+n)}, {s(SX,4)}, {s(sOffX)} offen lds"]
            n -= 4
            return [f"s_add_u32 m0, {s(sLW)}, {1024*n}", f"buffer_load_dwordx4 {v(self.aVM+n)}, {s(SW,4)}, {s(sOffW)} offen lds"]
        def reads(st, ks):
            b = FR + 48*st
            x = [f"ds_read_b128 {v(b+4*u,4)}, {v(AD+ks)} offset:{2048*u}" for u in range(2)]
            m = [f"ds_read_b128 {v(b+8+4*T,4)}, {v(AD+2+ks)} offset:{2048*T}" for T in range(10)]
            return m[:1] + x + m[1:]
        def mfmas(st):
            b = FR + 48*st; r = []
            for T in range(10):
                for u in range(2):
                    d = v(ACC + 40*u + 8*(T % 5) + 4*(T // 5), 4)
                    r.append(f"{MF} {d}, {v(b+4*u,4)}, {v(b+8+4*T,4)}, {d}")
            return r
        radv = [f"v_add_u32 {v(AD+k)}, {s(sSlotR)}, {v(AD+4+k)}" for k in range(4)]
        self.extra_vm = 0
        tw = self.tw_items() if self.c.fused else []
        tail = [tw[0:4], tw[4:8], tw[8:12], tw[12:16]]
        self.staged(9, dma, 36864, 128, 128, reads, mfmas, radv, self.c.LcA, self.a1_mid, tail)
        cv = lambda d, x, y: f"v_cvt_pk_bf16_f32 {v(d)}, {v(x)}, {v(y)}"
        if self.c.fused:
            A("v_mov_b32 v3, 0", f"buffer_load_dword v4, v3, {s(SDBG,4)}, 0 offen sc1")
        def pk(et):
            return [cv(FR+8*et+4*u+k, ACC+40*u+8*et+2*k, ACC+40*u+8*et+2*k+1) for u in range(2) for k in range(4)]
        def mm(et):
            return [f"{MF} {v(ACC+40*u+8*et+4*im,4)}, {v(self.aF+2*im,4)}, {v(FR+8*et+4*u,4)}, 0" for u in range(2) for im in range(2)]
        def st(et):
            r = []
            for k in range(4):
                d = FR + 48 + 8*et + 2*k
                r += [cv(d, ACC+8*et+k, ACC+40+8*et+k), cv(d+1, ACC+8*et+4+k, ACC+44+8*et+k),
                      f"buffer_store_dwordx2 {v(d,2)}, {v(self.aUA)}, {s(SWS,4)}, {s(sK+k) if k else 0} offen offset:{128*et}" + self.sc()]
            return r
        A(pk(0), pk(1), mm(0), pk(2), mm(1), pk(3), st(0), mm(2), pk(4), st(1), mm(3), st(2), mm(4), st(3), st(4))
    def a2(self):
        A = self.A; c = self.c
        W, ACC, UF = 28, 124, 164
        perm = [0, 4, 2, 6, 1, 5, 3, 7]
        mv = [f"v_accvgpr_read_b32 {v(W+8*b+k)}, {a(8*b+perm[k])}" for b in range(8) for k in range(8)]
        dm = []
        for n in range(10):
            dm += [f"s_mov_b32 {s(sT1)}, {4096*n}", f"s_add_u32 m0, {s(sT0)}, {4096*n}",
                   f"buffer_load_dwordx4 {v(self.aUD)}, {s(SWS,4)}, {s(sT1)} offen{self.sc()} lds"]
        if c.fused:
            A("s_waitcnt vmcnt(20)")
            self.go_check()
            A(mv)
            A("v_mov_b32 v5, 1", "s_waitcnt vmcnt(0)", f"buffer_store_dword v5, {v(self.aFA)}, {s(SWS,4)}, 0 offen sc1")
            self.stamp(4)
            A("s_barrier")
            self.poll(self.aPA)
            self.stamp(5)
            A(f"s_lshl_b32 {s(sT0)}, {s(sWave)}, 10")
            A(dm)
        else:
            for it in self.tw_items(): A(it)
            A(f"s_lshl_b32 {s(sT0)}, {s(sWave)}, 10")
            A(dm); A(mv)
        A("s_waitcnt vmcnt(0)", "s_barrier")
        def rd(k):
            l, h = k >> 1, k & 1
            return [f"ds_read_b64 {v(UF+20*(k&1)+4*et+2*p,2)}, {v(self.aUR)} offset:{(16*l+4*(h+2*p))*640+128*et}" for et in range(5) for p in range(2)]
        A(rd(0))
        for k in range(8):
            m = [f"{MF} {v(ACC+20*tt+4*et,4)}, {v(UF+20*(k&1)+4*et,4)}, {v(W+32*tt+4*k,4)}, {v(ACC+20*tt+4*et,4) if k else 0}"
                 for et in range(5) for tt in range(2)]
            A(weave(m, rd(k+1) if k < 7 else [], span=7))
        self.stamp(6)
        cv = lambda d, x, y: f"v_cvt_pk_bf16_f32 {v(d)}, {v(x)}, {v(y)}"
        n = 0
        for var in range(2):
            for tt in range(2):
                b = ACC + 20*tt
                for k in range(9):
                    d = W + n; n += 1
                    A(cv(d, b+2*k, b+2*k+1) if var == 0 else cv(d, b+18-2*k, b+17-2*k),
                      f"ds_write_b32 {v(self.aLM if var else self.aLW)}, {v(d)} offset:{2304*tt+4*k}")
        A("s_waitcnt lgkmcnt(0)")
        for n in range(9): A(f"ds_read_b128 {v(W+40+4*n,4)}, {v(self.aLR)} offset:{1024*n}")
        for n in range(9): A(f"buffer_store_dwordx4 {v(W+40+4*n,4)}, {v(self.aSV+n)}, {s(SOUT,4)}, 0 offen")

    def a_ptrs(self):
        A = self.A
        A(f"s_cmp_ge_u32 {s(sWave)}, 2", "s_waitcnt lgkmcnt(0)", f"s_cselect_b64 {s(SW,2)}, s[12:13], s[10:11]")
        self.ptrs([(SX, 4), (SW2, 6), (SW3, 8)])

    def build(self):
        A = self.A; c = self.c
        k1 = KN + "_kernel"; k2 = "second_kernel"
        A('.amdgcn_target "amdgcn-amd-amdhsa--gfx950"', ".text")
        self.entry(k1, "L_A", "L_end")
        self.b1_setup()
        A("s_waitcnt lgkmcnt(0)"); self.ptrs([(SX, 14), (SW, 16), (SW2, 18)])
        wo = self.b1_main()
        self.stamp(3)
        self.attention(wo)
        if c.fused: self.b2()
        self.finish_role("L_end")
        A("L_A:")
        self.a1_setup(); self.a_ptrs()
        self.a1_main()
        self.stamp(3)
        if c.fused: self.a2()
        self.finish_role("L_end")
        A("L_end:", "s_endpgm")
        names = [k1]
        if not c.fused:
            names.append(k2)
            self.entry(k2, "L_A2", "L_end2")
            srd(A, SW2, 576*1152)
            A(f"s_mul_i32 {s(sCX)}, {s(sWave)}, 3072")
            self.b2_setup()
            A("s_waitcnt lgkmcnt(0)"); self.ptrs([(SW2, 18)])
            self.b2()
            self.finish_role("L_end2", 1)
            A("L_A2:")
            A(f"s_sub_u32 {s(sIdx)}, {s(sIdx)}, 24")
            srd(A, SW2, 2048*4096); srd(A, SW3, 2048*4096)
            self.a2_setup()
            A("s_waitcnt lgkmcnt(0)"); self.ptrs([(SW2, 6), (SW3, 8)])
            self.a2()
            self.finish_role("L_end2", 1)
            A("L_end2:", "s_endpgm")
        body = A.finish(names, verbose=True)
        hdr = "; FNet 2-D DFT (two-step, mirrored) + sliding dilated attention, generated by my own script\n"
        if c.fused: hdr += "; @launch grid=(256,1,1) block=(256,1,1) lds=163840\n"
        else:
            for n in names: hdr += f"; @launch kernel={n} grid=(256,1,1) block=(256,1,1) lds=163840\n"
        tail = '.section .rodata,"a"\n'
        for n in names:
            tail += f""".p2align 6
.amdhsa_kernel {n}
  .amdhsa_next_free_vgpr 512
  .amdhsa_next_free_sgpr 102
  .amdhsa_accum_offset 256
  .amdhsa_group_segment_fixed_size 0
  .amdhsa_kernarg_size 88
  .amdhsa_user_sgpr_count 2
  .amdhsa_user_sgpr_kernarg_segment_ptr 1
  .amdhsa_system_sgpr_workgroup_id_x 1
.end_amdhsa_kernel
"""
        return hdr + body + tail

def make(path, **kw):
    c = Cfg()
    for k, x in kw.items():
        assert hasattr(c, k), k
        setattr(c, k, x)
    open(path, 'w').write(Gen(c).build())

if __name__ == '__main__':
    kw = {}
    for x in sys.argv[2:]:
        k, val = x.split('='); kw[k] = eval(val)
    make(sys.argv[1], **kw)
```

```python
import sys, math
from asmgen import *

KN = "concat_heads__spectral_fnet__sliding_local_dilated__prompt"
MF = "v_mfma_f32_16x16x32_bf16"
O_OFF, U_OFF, FL_OFF, ST_OFF, WS_SIZE = 0, 0x280000, 0x500000, 0x600000, 0x700000
AFL = 6144
OOB = 0x80000000
SX, SW, SW2, SW3, SWS, SOUT, SDBG = 28, 32, 36, 40, 44, 48, 52
sWave, sXc, sIdx, sRb, sHg, sT0, sT1, sT2 = 56, 57, 58, 59, 60, 61, 62, 63
sLX, sLW, sSlotW, sSlotR, sOffX, sOffW, sCnt, sCX, sCW = 64, 65, 66, 67, 68, 69, 26, 27, 3
sM = 70
sK = 96
sCg2, sV0 = 100, 101
sRot = 79

class Cfg:
    fused = True; stamps = False; LcB = 20; LcA = 18; wo_split = (3, 4, 4, 4); nb1 = 120
    poll_max = 1 << 16
    x_nodma = False; x_nomfma = False; x_nord = False; cluster = False; probe = None; dflag = ''
    rotB = None; rotA = None; nfirst = 6; frac = 0.6; npre = 3; lgw = 0; even = True; rspan = 0.75; cyc = False; pref = True; fsh = 0; psleep = 0; x_noA = False; x_noex = False
    smap = {0:0, 1:1, 2:2, 3:3, 4:4, 5:5, 6:6, 7:7}

def div(A, d, src, k, n):
    m = -(-65536 // k)
    assert all((x * m) >> 16 == x // k for x in range(n)), (k, n)
    A(f"v_mul_u32_u24 {v(d)}, {m}, {v(src)}", f"v_lshrrev_b32 {v(d)}, 16, {v(d)}")

def srd(A, r, nbytes):
    A(f"s_mov_b32 {s(r+2)}, {nbytes}", f"s_mov_b32 {s(r+3)}, 0x20000")

class Gen:
    def __init__(self, c):
        self.c = c; self.A = Asm(); self.uid = 0
    def lab(self, n):
        self.uid += 1; return f"L_{n}_{self.uid}"
    def stamp(self, k):
        if self.c.stamps and k in self.c.smap: self.A(f"s_memrealtime {s(80+2*self.c.smap[k],2)}")
    def sc(self): return " sc1" if self.c.fused else ""

    def entry(self, name, lA, lEnd, rot=False):
        A = self.A
        A(f".globl {name}", ".p2align 8", f".type {name},@function", f"{name}:")
        A("s_cmp_ge_u32 s2, 256", f"s_cbranch_scc1 {lEnd}")
        A("s_load_dwordx16 s[4:19], s[0:1], 0", "s_load_dwordx4 s[20:23], s[0:1], 64", "s_load_dwordx2 s[24:25], s[0:1], 80")
        if rot:
            A("s_getpc_b64 s[26:27]", "L_pc:", "s_and_b32 s3, s2, 7", "s_lshl_b32 s3, s3, 4", f"s_lshr_b32 {s(sT0)}, s2, 6", f"s_lshl_b32 {s(sT0)}, {s(sT0)}, 2",
              f"s_add_u32 s3, s3, {s(sT0)}", "s_add_u32 s3, s3, L_tab-L_pc", f"s_load_dword {s(sRot)}, s[26:27], s3")
        if self.c.stamps:
            for k in range(8): A(f"s_mov_b32 {s(80+2*k)}, 0")
        self.stamp(0)
        A("v_lshrrev_b32 v1, 6, v0", "v_and_b32 v0, 63, v0", f"v_readfirstlane_b32 {s(sWave)}, v1")
        A(f"s_and_b32 {s(sXc)}, s2, 7", f"s_lshr_b32 {s(sIdx)}, s2, 3")
        A("v_and_b32 v1, 15, v0", "v_lshrrev_b32 v2, 4, v0")
        srd(A, SWS, WS_SIZE); srd(A, SOUT, 2048*2304); srd(A, SDBG, 256)
        A(f"s_cmp_ge_u32 {s(sIdx)}, 24", f"s_cbranch_scc1 {lA}")
        if rot:
            A("s_branch L_tabend", "L_tab:")
            fB = self.c.rotB or (lambda rl, hl, xq, xp: 0); fA = self.c.rotA or (lambda rl, cl, xq, xp: 0)
            for x in range(8):
                for d in range(4):
                    w = 0
                    for k in range(8):
                        idx = 8*d + k
                        r = fB(idx >> 2, idx & 3, x >> 1, x & 1) if idx < 24 else fA((idx-24) >> 1, idx & 1, x >> 1, x & 1)
                        w |= (r % 9) << (4*k)
                    A(f".long {w:#x}")
            A("L_tabend:")
    def ptrs(self, m):
        A = self.A
        for r, p in m: A(f"s_mov_b64 {s(r,2)}, {s(p,2)}")
        A(f"s_mov_b64 {s(SWS,2)}, s[24:25]", f"s_mov_b64 {s(SOUT,2)}, s[20:21]", f"s_mov_b64 {s(SDBG,2)}, s[22:23]")
    def finish_role(self, lEnd, kidx=0):
        A = self.A
        if self.c.stamps:
            A("s_waitcnt vmcnt(0)")
            self.stamp(7)
            A("s_waitcnt lgkmcnt(0)")
            if self.c.probe:
                k, wg = self.c.probe; l0 = self.lab("pr"); l1 = self.lab("prx")
                A(f"s_lshl_b32 {s(sT0)}, s2, 2", f"s_add_u32 {s(sT0)}, {s(sT0)}, {s(sWave)}", f"s_cmp_lg_u32 {s(sT0)}, {4*wg}", f"s_cbranch_scc1 {l1}",
                  f"s_sub_u32 {s(sT0)}, {s(80+2*k)}, s80", f"s_mul_i32 {s(sT0)}, {s(sT0)}, 10", f"s_add_u32 {s(sT0)}, {s(sT0)}, 4000",
                  f"s_min_u32 {s(sT0)}, {s(sT0)}, 100000",
                  f"{l0}:", "s_memrealtime s[4:5]", "s_waitcnt lgkmcnt(0)", f"s_sub_u32 {s(sT1)}, s4, s80", f"s_cmp_lt_u32 {s(sT1)}, {s(sT0)}",
                  f"s_cbranch_scc1 {l0}", f"{l1}:")
            A(f"s_lshl_b32 {s(sT0)}, s2, 2", f"s_add_u32 {s(sT0)}, {s(sT0)}, {s(sWave)}", f"s_lshl_b32 {s(sT0)}, {s(sT0)}, 6",
              f"s_add_u32 {s(sT0)}, {s(sT0)}, {ST_OFF + 0x20000}", f"v_lshl_add_u32 v3, v0, 2, {s(sT0)}", f"v_mov_b32 v12, {OOB}",
              "v_cmp_gt_u32 vcc, 16, v0", "v_cndmask_b32 v3, v12, v3, vcc")
            if kidx == 0: A(f"buffer_store_dword v9, v3, {s(SWS,4)}, 0 offen", "s_nop 4")
            for k in range(8): A(f"v_mov_b32 {v(4+k)}, {s(80+2*k)}")
            A(f"s_lshl_b32 {s(sT0)}, s2, 2", f"s_add_u32 {s(sT0)}, {s(sT0)}, {s(sWave)}", f"s_lshl_b32 {s(sT0)}, {s(sT0)}, 5",
              f"s_add_u32 {s(sT0)}, {s(sT0)}, {ST_OFF + kidx*0x10000}", f"v_mov_b32 v3, {s(sT0)}", f"v_mov_b32 v12, {OOB}",
              "v_cmp_eq_u32 vcc, 0, v0", "v_cndmask_b32 v3, v12, v3, vcc",
              f"buffer_store_dwordx4 v[4:7], v3, {s(SWS,4)}, 0 offen", f"buffer_store_dwordx4 v[8:11], v3, {s(SWS,4)}, 0 offen offset:16")
        A("s_endpgm")

    def staged(self, nd, dma, slot, stepX, stepW, reads, mfmas, radv, Lc, mid_setup, tail, ptrs, late, post=[]):
        A = self.A
        NS = 9; tot = NS * nd
        wadv = [f"s_add_u32 {s(sSlotW)}, {s(sSlotW)}, {slot}", f"s_cmp_eq_u32 {s(sSlotW)}, {4*slot}",
                f"s_cselect_b32 {s(sSlotW)}, 0, {s(sSlotW)}", f"s_add_u32 {s(sLX)}, {s(sSlotW)}, {s(sCX)}",
                f"s_add_u32 {s(sLW)}, {s(sSlotW)}, {s(sCW)}", f"s_add_u32 {s(sOffX)}, {s(sOffX)}, {stepX}",
                f"s_add_u32 {s(sOffW)}, {s(sOffW)}, {stepW}", [f"s_cmp_eq_u32 {s(sOffX)}, {9*stepX}",
                f"s_cselect_b32 {s(sOffX)}, 0, {s(sOffX)}"], f"s_cselect_b32 {s(sOffW)}, 0, {s(sOffW)}"]
        sadv = [f"s_add_u32 {s(sSlotR)}, {s(sSlotR)}, {slot}", f"s_cmp_eq_u32 {s(sSlotR)}, {4*slot}",
                f"s_cselect_b32 {s(sSlotR)}, 0, {s(sSlotR)}"]
        def items(g0, g1):
            r = []
            for g in range(g0, min(g1, tot)):
                it = list(dma(g % nd))
                if g % nd == nd - 1: it.append(wadv)
                r.append(it)
            return r
        def mix(rd, its):
            out = []; rd = list(rd)
            per = max(1, len(rd) // max(1, len(its))) if its else 0
            if self.c.cluster:
                for it in its:
                    pre = it[0] if isinstance(it[0], list) else [it[0]]
                    rd.append(pre + [it[1]] + sum(it[2:], []))
                return rd
            for it in its:
                pre = it[0] if isinstance(it[0], list) else [it[0]]
                out += pre
                if rd: out.append(rd.pop(0))
                out.append(it[1])
                for _ in range(per - 1):
                    if rd: out.append(rd.pop(0))
                for e in it[2:]: out += e
            return out + rd
        A(f"s_mov_b32 {s(sSlotW)}, 0", f"s_mov_b32 {s(sSlotR)}, 0", f"s_mov_b32 {s(sLX)}, {s(sCX)}", f"s_mov_b32 {s(sLW)}, {s(sCW)}",
          f"s_lshr_b32 {s(sOffX)}, s2, 1", f"s_and_b32 {s(sOffX)}, {s(sOffX)}, 28")
        ptrs()
        A(f"s_lshr_b32 {s(sRot)}, {s(sRot)}, {s(sOffX)}", f"s_and_b32 {s(sRot)}, {s(sRot)}, 15",
          f"s_mul_i32 {s(sOffX)}, {s(sRot)}, {stepX}", f"s_mul_i32 {s(sOffW)}, {s(sRot)}, {stepW}")
        self.stamp(1)
        its = items(0, Lc)
        nf = self.c.nfirst
        for k in range(nf):
            A(late.pop(k, [])); A(its[k])
        for k in sorted(late): A(late[k])
        keep = A.L; A.L = []
        mid_setup()
        ms = A.L; A.L = keep
        grp = [[]]
        inb = False
        for x in ms:
            if x.startswith('s_cmp'): inb = True
            if x.startswith('v_') and not inb: grp.append([])
            grp[-1].append(x)
            if x.endswith(':'): inb = False
        A(weave(grp, its[nf:], first=int(len(grp) * self.c.frac)))
        A(f"s_waitcnt vmcnt({Lc-nd})", "s_barrier")
        self.stamp(2)
        if self.c.stamps: A("s_memtime s[4:5]" if self.c.cyc else "s_memrealtime s[4:5]", "s_mov_b32 s6, 0")
        A(post)
        if post and self.c.x_noA: A("s_endpgm")
        A(reads(0, 0))
        h0 = (nd + 1) // 2
        nloop = (tot - Lc) // nd
        def place(m, rd, its, extra):
            if not self.c.even: return weave(m, mix(rd, its) + extra, span=len(m) - 2)
            n = len(m); gaps = [[] for _ in range(n)]
            for k, it in enumerate(its):
                p = min(n - 2, (k * n) // len(its))
                gaps[p] += it[0] if isinstance(it[0], list) else [it[0]]
                gaps[p+1].append(it[1])
                q = p + 1
                for e in it[2:]:
                    lim = min(n - 2, ((k+1) * n) // len(its)) if k + 1 < len(its) else n
                    sl = list(range(q, lim)) or [q]
                    for j, x in enumerate(e): gaps[sl[j * len(sl) // len(e)]].append(x)
            nr = max(1, int(n * self.c.rspan))
            rd = list(rd)
            lvl = 1
            while sum(max(0, lvl - len(g)) for g in gaps[:nr]) < len(rd): lvl += 1
            for g in gaps[:nr]:
                while rd and len(g) < lvl: g.append(rd.pop(0))
            if extra:
                gaps[n-7].insert(0, extra[:3]) if not any('s_cselect' in str(x) for x in gaps[n-7]) else gaps[n-4].append(extra[:3])
                gaps[n-3] += extra[3:5]; gaps[n-2] += extra[5:]
            out = []
            for x, g in zip(m, gaps): out += [x] + g
            return out
        def stage(st, issued, last, t0, t1):
            i0 = items(issued, issued + h0); i1 = items(issued + h0, issued + nd)
            n0 = len(i0) + len(t0)
            m = mfmas(0)
            A(f"s_waitcnt lgkmcnt({self.c.lgw})")
            if self.c.stamps: A("v_writelane_b32 v9, s4, m0" if False else "s_mov_b32 m0, s6", "v_writelane_b32 v9, s4, m0", "s_add_u32 s6, s6, 1")
            A(place(m, reads(1, 1), i0 + t0, [] if last else sadv + radv))
            if not last:
                w = min(issued, tot) + self.tail_cnt + n0 - nd * (st + 2)
                A(f"s_waitcnt vmcnt({max(w,0)}) lgkmcnt({self.c.lgw})", "s_barrier")
                if self.c.stamps: A("s_memtime s[4:5]" if self.c.cyc else "s_memrealtime s[4:5]")
            self.tail_cnt += len(t0) + len(t1)
            m = mfmas(1)
            A(place(m, [] if last else reads(0, 0), i1 + t1, []))
        self.tail_cnt = 0
        if self.c.x_nodma:
            d0 = dma; dma = lambda n: [d0(n)[0], "s_nop 0"]
        if self.c.x_nomfma:
            m0_ = mfmas; mfmas = lambda st: ["s_nop 0"] * len(m0_(st))
        if self.c.x_nord:
            reads = lambda st, ks: []
        lp = self.lab("loop")
        A(f"s_mov_b32 {s(sCnt)}, {nloop}", f"{lp}:")
        stage(0, Lc, False, [], [])
        A(f"s_sub_u32 {s(sCnt)}, {s(sCnt)}, 1", f"s_cmp_lg_u32 {s(sCnt)}, 0", f"s_cbranch_scc1 {lp}")
        tl = [[] for _ in range(2 * (NS - nloop) - 4)] + tail
        for st in range(nloop, NS):
            k = 2 * (st - nloop)
            stage(st, Lc + st * nd, st == NS - 1, tl[k], tl[k + 1])

    VX, VW, AD, FR, ACC, QB, BIAS, SEL, ONE, MSK, GM, OA, OE, WOV = 10, 13, 20, 28, 108, 192, 216, 228, 232, 236, 238, 240, 243, 246
    HW, HR, FA, PA = 252, 253, 254, 255
    WO = 40960; HALO = 151552
    def b_ids(self):
        A = self.A
        A(f"s_lshr_b32 {s(sT0)}, {s(sXc)}, 1", f"s_mul_i32 {s(sRb)}, {s(sT0)}, 6", f"s_lshr_b32 {s(sT0)}, {s(sIdx)}, 2",
          f"s_add_u32 {s(sRb)}, {s(sRb)}, {s(sT0)}", f"s_and_b32 {s(sHg)}, {s(sXc)}, 1", f"s_lshl_b32 {s(sHg)}, {s(sHg)}, 2",
          f"s_and_b32 {s(sT0)}, {s(sIdx)}, 3", f"s_add_u32 {s(sHg)}, {s(sHg)}, {s(sT0)}",
          f"s_mul_i32 {s(sV0)}, {s(sRb)}, 88", f"s_sub_u32 {s(sV0)}, {s(sV0)}, 8")
    def b1_setup(self):
        A = self.A; VX, VW = self.VX, self.VW
        self.b_ids()
        srd(A, SX, 2048*1152); srd(A, SW, 576*3456); srd(A, SW2, 576*1152)
        A(f"s_mul_i32 {s(sCX)}, {s(sWave)}, 3072", f"s_mul_i32 {s(sCW)}, {s(sWave)}, 7168", f"s_add_u32 {s(sCW)}, {s(sCW)}, 12288")
        A(f"s_mul_i32 {s(sT0)}, {s(sWave)}, 24", "v_lshrrev_b32 v3, 3, v0", f"v_add_u32 v3, {s(sT0)}, v3", "v_and_b32 v4, 7, v0",
          f"v_mov_b32 v9, {OOB}")
        for n in range(3):
            A(f"v_add_u32 v5, {8*n}, v3", "v_bfe_u32 v6, v5, 1, 3", "v_xor_b32 v6, v6, v4", f"v_add_u32 v5, {s(sV0)}, v5",
              "v_and_b32 v7, 1023, v5", "v_lshrrev_b32 v8, 10, v5", "v_lshl_or_b32 v7, v7, 1, v8", "v_cmp_gt_u32 vcc, 2048, v5",
              "v_mul_u32_u24 v7, 1152, v7", "v_lshl_add_u32 v7, v6, 4, v7", f"v_cndmask_b32 {v(VX+n)}, v9, v7, vcc")
        A(f"s_mul_i32 {s(sT0)}, {s(sWave)}, {16*3456}", f"s_mul_i32 {s(sT1)}, {s(sHg)}, 144", f"s_add_u32 {s(sT0)}, {s(sT0)}, {s(sT1)}")
        self.late = {}
        for n in range(7):
            if n >= self.c.npre: keep = A.L; A.L = []
            A(f"v_add_u32 v3, {64*n}, v0")
            div(A, 4, 3, 27, 448)
            A("v_mul_u32_u24 v5, 27, v4", "v_sub_u32 v5, v3, v5")
            div(A, 6, 5, 9, 27)
            A("v_mul_u32_u24 v6, 1008, v6", "v_lshl_add_u32 v5, v5, 4, v6",
              "v_bfe_u32 v6, v4, 1, 2", "v_and_b32 v7, 1, v4", "v_lshl_or_b32 v6, v7, 2, v6", "v_and_or_b32 v6, v4, 8, v6",
              "v_mul_u32_u24 v6, 3456, v6", f"v_add3_u32 {v(VW+n)}, v5, v6, {s(sT0)}")
            if n == 6: A("v_cmp_gt_u32 vcc, 48, v0", f"v_cndmask_b32 {v(VW+n)}, v9, {v(VW+n)}, vcc")
            if n >= self.c.npre: self.late[3+n] = A.L; A.L = keep
    def b1_mid(self):
        A = self.A; AD = self.AD
        A(f"s_lshr_b32 {s(sT0)}, {s(sWave)}, 1", f"s_mul_i32 {s(sT0)}, {s(sT0)}, 48",
          f"s_and_b32 {s(sT1)}, {s(sWave)}, 1")
        A(f"v_add_u32 v3, {s(sT0)}, v1", "v_lshrrev_b32 v4, 1, v1", "v_xor_b32 v4, v4, v2", "v_lshlrev_b32 v4, 4, v4",
          f"v_lshl_add_u32 {v(AD+4)}, v3, 7, v4", f"v_xor_b32 {v(AD+5)}, 64, {v(AD+4)}")
        A("v_lshrrev_b32 v4, 1, v2", "v_mul_u32_u24 v4, 7168, v4", "v_and_b32 v5, 1, v2", "v_bfe_u32 v6, v0, 2, 2",
          "v_lshl_add_u32 v5, v5, 2, v6", "v_mul_u32_u24 v5, 864, v5", f"s_mul_i32 {s(sT2)}, {s(sT1)}, 72",
          f"s_add_u32 {s(sT2)}, {s(sT2)}, 12288", f"v_add3_u32 v4, v4, v5, {s(sT2)}", "v_and_b32 v5, 3, v0",
          f"v_lshl_add_u32 {v(AD+6)}, v5, 3, v4", "v_cmp_eq_u32 vcc, 3, v5", "v_cndmask_b32 v5, v5, 1, vcc",
          "v_mul_u32_u24 v5, 144, v5", f"v_add3_u32 {v(AD+7)}, v4, v5, 32")
        for k in range(4): A(f"v_mov_b32 {v(AD+k)}, {v(AD+4+k)}")
        for r in range(84): A(f"v_mov_b32 {v(self.ACC+r)}, 0")
        A("v_mov_b32 v8, 0xf149f2ca", f"v_mov_b32 v9, {OOB}")
        A(f"s_lshl_b32 {s(sT2)}, {s(sHg)}, 1", f"s_add_u32 {s(sT2)}, {s(sT2)}, {s(sT1)}", f"s_lshl_b32 {s(sK)}, {s(sT2)}, 10",
          f"s_lshl_b32 {s(sK+1)}, {s(sHg)}, 8", f"s_add_u32 {s(sK+1)}, {s(sK+1)}, 16384", f"s_lshl_b32 {s(sT2)}, {s(sT1)}, 3",
          f"s_add_u32 {s(sK+1)}, {s(sK+1)}, {s(sT2)}")
        A("v_lshlrev_b32 v7, 2, v2", "v_sub_u32 v7, v1, v7")
        for r in range(4): A(f"v_subrev_u32 v6, {r}, v7", f"v_and_b32 {v(self.SEL+r)}, 15, v6")
        for i in range(3):
            A(f"v_add_u32 v4, {16*i}, v3", f"v_add_u32 v5, {s(sV0)}, v4",
              "v_and_b32 v6, 1023, v5", "v_min_u32 v6, 7, v6")
            for r in range(4): A(f"v_cmp_le_u32 {s(sM+2*r,2)}, {v(self.SEL+r)}, v6")
            for r in range(4): A(f"v_cndmask_b32 {v(self.BIAS+4*i+r)}, v8, 0, {s(sM+2*r,2)}")
            A("v_lshrrev_b32 v6, 4, v5", "v_mul_u32_u24 v6, 18432, v6", "v_and_b32 v7, 15, v5", "v_lshl_add_u32 v6, v7, 4, v6",
              "v_cmp_le_u32 vcc, 8, v4", f"v_cmp_gt_u32 {s(sM,2)}, 2048, v5" if False else f"v_mov_b32 v7, 2048",
              f"v_cmp_gt_u32 {s(sM,2)}, v7, v5", f"s_and_b64 vcc, vcc, {s(sM,2)}",
              "v_lshl_add_u32 v7, v2, 8, v6", f"v_add_u32 v7, {s(sK)}, v7", f"v_cndmask_b32 {v(self.OA+i)}, v9, v7, vcc",
              f"v_cmp_gt_u32 {s(sM,2)}, 2, v2", f"s_and_b64 vcc, vcc, {s(sM,2)}",
              "v_lshl_add_u32 v7, v2, 2, v6", f"v_add_u32 v7, {s(sK+1)}, v7", f"v_cndmask_b32 {v(self.OE+i)}, v9, v7, vcc")
            A(f"v_mov_b32 {v(self.QB+8*i+3)}, 0", f"v_mov_b32 {v(self.QB+8*i+5)}, 0")
        for r in range(4):
            A("v_lshl_add_u32 v7, v2, 2, " + str(r), f"v_cmp_gt_u32 {s(sM+2*r,2)}, v7, v1")
        A("v_mov_b32 v4, 0xffff", "v_mov_b32 v5, 0xffff0000")
        for h in range(2):
            A(f"v_cndmask_b32 v6, 0, v4, {s(sM+4*h,2)}", f"v_cndmask_b32 v7, 0, v5, {s(sM+4*h+2,2)}", f"v_or_b32 {v(self.MSK+h)}, v6, v7")
        A(f"v_cmp_eq_u32 {s(sM+8,2)}, 0, v2", "v_cmp_eq_u32 vcc, 1, v2", f"v_cndmask_b32 {v(self.GM)}, 0, -1, {s(sM+8,2)}",
          f"v_cndmask_b32 {v(self.GM+1)}, 0, -1, vcc")
        for r in range(4): A(f"v_mov_b32 {v(self.SEL+r)}, 0")
        A(f"s_mov_b32 {s(sT2)}, 0x3f80", f"v_writelane_b32 {v(self.SEL+3)}, {s(sT2)}, 32", f"v_writelane_b32 {v(self.SEL+3)}, {s(sT2)}, 52",
          f"v_writelane_b32 {v(self.SEL+3)}, 1.0, 33", f"v_writelane_b32 {v(self.SEL+3)}, 1.0, 53")
        A("v_and_b32 v4, 3, v0", "v_cmp_eq_u32 vcc, 2, v4")
        for r in range(4): A(f"v_cndmask_b32 {v(self.ONE+r)}, 0, 1.0, vcc")
        A(f"s_mul_i32 {s(sT2)}, {s(sWave)}, 3072", f"s_add_u32 {s(sT2)}, {s(sT2)}, {self.HALO}", f"v_lshl_add_u32 {v(self.HW)}, v0, 3, {s(sT2)}",
          f"s_mul_i32 {s(sT2)}, {s(sT1)}, 3072", f"s_add_u32 {s(sT2)}, {s(sT2)}, {self.HALO}", f"v_lshl_add_u32 {v(self.HR)}, v0, 3, {s(sT2)}")
        if self.c.fused:
            A(f"s_lshr_b32 {s(sT2)}, {s(sWave)}, 1", f"s_lshl_b32 {s(sT0)}, {s(sRb)}, 1", f"s_add_u32 {s(sT2)}, {s(sT2)}, {s(sT0)}",
              f"s_lshl_b32 {s(sT2)}, {s(sT2)}, 6", f"s_lshr_b32 {s(sT0)}, {s(sK)}, 8", f"s_add_u32 {s(sT2)}, {s(sT2)}, {s(sT0)}",
              f"s_lshl_b32 {s(sT2)}, {s(sT2)}, {self.c.fsh}",
              f"s_add_u32 {s(sT2)}, {s(sT2)}, {FL_OFF}", f"v_mov_b32 v4, {s(sT2)}", "v_cmp_eq_u32 vcc, 0, v0",
              f"v_cndmask_b32 {v(self.FA)}, v9, v4, vcc")
            self.b2_setup()
    def b2_setup(self):
        A = self.A; WOV = self.WOV
        A(f"s_mul_i32 {s(sT0)}, {s(sIdx)}, 43", f"s_lshr_b32 {s(sT0)}, {s(sT0)}, 8", f"s_mul_i32 {s(sT1)}, {s(sT0)}, 6",
          f"s_sub_u32 {s(sCg2)}, {s(sIdx)}, {s(sT1)}", f"s_lshl_b32 {s(sT1)}, {s(sXc)}, 2", f"s_add_u32 {s(sT0)}, {s(sT0)}, {s(sT1)}",
          f"s_lshl_b32 {s(sT0)}, {s(sT0)}, 2", f"s_add_u32 {s(sIdx)}, {s(sT0)}, {s(sWave)}", f"s_mul_i32 {s(sCg2)}, {s(sCg2)}, 192")
        assert all((i*43) >> 8 == i // 6 for i in range(24))
        A(f"s_and_b32 {s(sT0)}, {s(sWave)}, 1", f"s_lshl_b32 {s(sT0)}, {s(sT0)}, 1",
          f"s_lshr_b32 {s(sT1)}, {s(sWave)}, 1")
        for n in range(3):
            A(f"v_add_u32 v3, {64*n}, v0")
            div(A, 4, 3, 12, 192)
            A("v_mul_u32_u24 v5, 12, v4", "v_sub_u32 v5, v3, v5",
              "v_lshrrev_b32 v6, 3, v4", "v_lshlrev_b32 v7, 1, v6", "v_xor_b32 v5, v5, v7",
              f"v_lshl_add_u32 v5, v5, 4, {s(sCg2)}",
              f"v_add_u32 v6, {s(sT0)}, v6",
              "v_bfe_u32 v7, v4, 2, 1", "v_and_b32 v4, 3, v4",
              "v_lshl_add_u32 v3, v6, 2, v4", "v_mad_u32_u24 v3, v7, 20, v3", f"s_mul_i32 {s(sT2)}, {s(sT1)}, 36",
              f"v_add_u32 v3, {s(sT2)}, v3", "v_mul_u32_u24 v3, 1152, v3", f"v_add_u32 {v(WOV+n)}, v3, v5",
              "v_lshl_add_u32 v3, v6, 1, v7", f"s_lshl_b32 {s(sT2)}, {s(sT1)}, 3", f"v_add_u32 v3, {s(sT2)}, v3",
              "v_mad_u32_u24 v3, v3, 36, v4", "v_add_u32 v3, 16, v3", "v_mul_u32_u24 v3, 1152, v3", f"v_add_u32 {v(WOV+3+n)}, v3, v5")
        if self.c.fused:
            A("v_and_b32 v3, 1, v2", f"s_lshl_b32 {s(sT2)}, {s(sIdx)}, 1", f"v_add_u32 v3, {s(sT2)}, v3")
            div(A, 4, 3, 11, 256)
            A("v_mul_u32_u24 v5, 11, v4", "v_sub_u32 v5, v3, v5", "v_cmp_le_u32 vcc, 5, v5", "v_cndmask_b32 v5, 0, 1, vcc",
              "v_lshl_add_u32 v4, v4, 1, v5", "v_lshlrev_b32 v4, 6, v4", "v_lshl_add_u32 v4, v1, 2, v4", f"v_lshlrev_b32 v4, {self.c.fsh}, v4",
              f"v_add_u32 {v(self.PA)}, {FL_OFF}, v4")
    def wo_items(self):
        r = []
        for P in range(9):
            for n in range(3):
                pre = [f"s_add_u32 m0, {s(sCX)}, {self.WO + P*12288 + 1024*n}"]
                if n == 0: pre = [f"s_mov_b32 {s(sK+2)}, {P*72*1152 if P < 8 else 0}"] + pre
                r.append([pre, f"buffer_load_dwordx4 {v(self.WOV + n + (3 if P == 8 else 0))}, {s(SW2,4)}, {s(sK+2)} offen lds"])
        return r
    def b1_main(self):
        A = self.A; FR, AD, ACC = self.FR, self.AD, self.ACC
        def dma(n):
            if n < 3: return [f"s_add_u32 m0, {s(sLX)}, {1024*n}", f"buffer_load_dwordx4 {v(self.VX+n)}, {s(SX,4)}, {s(sOffX)} offen {self.c.dflag} lds"]
            n -= 3
            return [f"s_add_u32 m0, {s(sLW)}, {1024*n}", f"buffer_load_dwordx4 {v(self.VW+n)}, {s(SW,4)}, {s(sOffW)} offen {self.c.dflag} lds"]
        toff = [0, 40, 144, 184, None, 288, 328]
        def reads(st, ks):
            b = FR + 40*st
            def w(T):
                r = []
                for hh in range(2):
                    if T == 4: r.append(f"ds_read_b64_tr_b16 {v(b+12+4*T+2*hh,2)}, {v(AD+3)} offset:{ks*14336+hh*432}")
                    else: r.append(f"ds_read_b64_tr_b16 {v(b+12+4*T+2*hh,2)}, {v(AD+2)} offset:{ks*14336+hh*432+toff[T]}")
                return r
            x = [f"ds_read_b128 {v(b+4*i,4)}, {v(AD+ks)} offset:{2048*i}" for i in range(3)]
            return w(0) + x + sum((w(T) for T in range(1, 7)), [])
        def mfmas(st):
            b = FR + 40*st; r = []
            for T in range(7):
                for i in range(3):
                    d = v(ACC + 28*i + 4*T, 4); X = v(b+4*i, 4); W = v(b+12+4*T, 4)
                    r.append(f"{MF} {d}, {W}, {X}, {d}" if T < 5 else f"{MF} {d}, {X}, {W}, {d}")
            return r
        radv = [f"v_add_u32 {v(AD+k)}, {s(sSlotR)}, {v(AD+4+k)}" for k in range(4)]
        self.extra_vm = 0
        wo = self.wo_items() if self.c.fused else []
        tail = []
        for n in self.c.wo_split:
            tail.append(wo[:n]); wo = wo[n:]
        self.staged(10, dma, 40960, 128, 64*3456, reads, mfmas, radv, self.c.LcB, self.b1_mid, tail,
                    lambda: (A("s_waitcnt lgkmcnt(0)"), self.ptrs([(SX, 14), (SW, 16), (SW2, 18)])), self.late)
        return wo
    def attention(self, wo):
        A = self.A; ACC, QB = self.ACC, self.QB
        KB = self.FR; VB = KB + 24; VE = VB + 16; TM = VE + 8
        cv = lambda d, x: f"v_cvt_pk_bf16_f32 {v(d)}, {v(x)}, {v(x+1)}"
        c = 18 ** -0.5 * math.log2(math.e)
        import struct
        cbits = struct.unpack('<I', struct.pack('<f', c))[0]
        A(f"s_mov_b32 {s(sK+3)}, {cbits:#x}")
        def packkv(i):
            ac = ACC + 28*i; kb = KB + 6*(i+1)
            r = [cv(kb+3, ac+16), cv(kb+2, ac+18), cv(kb, ac+8), cv(kb+1, ac+10),
                 f"v_permlane16_swap_b32 {v(kb+3)}, {v(kb+2)}", cv(kb+4, ac+12), cv(kb+5, ac+14),
                 f"{MF} {v(ac+16,4)}, {v(kb,4)}, {v(self.SEL,4)}, {v(self.ONE,4)}"]
            for h in range(2):
                r += [cv(VB+8*h+2*(i+1), ac+20+4*h), cv(VB+8*h+2*(i+1)+1, ac+22+4*h)]
            return r
        def packq(i):
            ac = ACC + 28*i; q = QB + 8*i; kb = KB + 6*(i+1)
            return [cv(q, ac), cv(q+1, ac+2), cv(q+6, ac+4), cv(q+7, ac+6),
                    f"v_and_b32 {v(q+2)}, {v(self.GM)}, {v(kb+3)}", f"v_and_b32 {v(q+4)}, {v(self.GM+1)}, {v(kb+3)}"]
        def packve(i):
            ac = ACC + 28*i
            return [cv(VE+2*(i+1), ac+16), cv(VE+2*(i+1)+1, ac+18)]
        def smm(i):
            ac = ACC + 28*i; r = []
            for h in range(2):
                for pc in range(2):
                    r.append(f"{MF} {v(ac+8*h+4*pc,4)}, {v(KB+6*(i+pc)+2*h,4)}, {v(QB+8*i+4*h,4)}, {v(self.BIAS+4*i,4)}")
            return r
        def merge(i):
            ac = ACC + 28*i; r = []
            for h in range(2):
                b = ac + 8*h
                for k in range(4): r.append(f"v_cndmask_b32 {v(b+4+k)}, {v(b+4+k)}, {v(b+k)}, {s(sM+2*k,2)}")
                r += [f"v_max3_f32 {v(b)}, {v(b+4)}, {v(b+5)}, {v(b+6)}", f"v_max_f32 {v(b)}, {v(b)}, {v(b+7)}"]
            return r
        def red(i):
            x = ACC + 28*i; y = x + 8
            return [[f"v_permlane32_swap_b32 {v(x)}, {v(y)}"],
                    [f"v_max_f32 {v(x+1)}, {v(x)}, {v(y)}", f"v_max_f32 {v(y+1)}, {v(x)}, {v(y)}"],
                    [f"v_permlane16_swap_b32 {v(x+1)}, {v(y+1)}"],
                    [f"v_max_f32 {v(x+1)}, {v(x+1)}, {v(y+1)}"],
                    [f"v_mul_f32 {v(x)}, {s(sK+3)}, {v(x+1)}", f"v_mul_f32 {v(y)}, {s(sK+3)}, {v(x+1)}"],
                    [f"v_permlane32_swap_b32 {v(x)}, {v(y)}"]]
        def expo(i):
            ac = ACC + 28*i; r = []
            for h in range(2):
                b = ac + 8*h
                r += [f"v_fma_f32 {v(b+4+k)}, {v(b+4+k)}, {s(sK+3)}, -{v(b)}" for k in range(4)]
                r += [f"v_exp_f32 {v(b+4+k)}, {v(b+4+k)}" for k in range(4)]
            for h in range(2):
                b = ac + 8*h; p = ac + 20 + 4*h
                r += [cv(b, b+4), cv(b+1, b+6)]
                r += [f"v_and_b32 {v(p+k)}, {v(self.MSK+k)}, {v(b+k)}" for k in range(2)]
                r += [f"v_xor_b32 {v(p+2+k)}, {v(p+k)}, {v(b+k)}" for k in range(2)]
            return r
        def pv(i):
            ac = ACC + 28*i; r = []
            for h in range(2):
                p = v(ac+20+4*h, 4)
                r += [f"{MF} {v(ac+8*h+4,4)}, {v(VE+2*i,4)}, {p}, 0", f"{MF} {v(ac+8*h,4)}, {v(VB+8*h+2*i,4)}, {p}, 0"]
            return r
        def fin(i):
            ac = ACC + 28*i; r = []
            r += [f"v_rcp_f32 {v(ac+7)}, {v(ac+6)}", f"v_rcp_f32 {v(ac+15)}, {v(ac+14)}"]
            r += [f"v_cndmask_b32 {v(ac+4+k)}, {v(ac+12+k)}, {v(ac+4+k)}, {s(sM+8,2)}" for k in range(2)]
            for h in range(2):
                b = ac + 8*h
                r += [f"v_mul_f32 {v(b+k)}, {v(b+k)}, {v(b+7)}" for k in range(4)]
                r += [cv(ac+16+2*h, b), cv(ac+17+2*h, b+2)]
            r += [f"v_cndmask_b32 {v(ac+6)}, {v(ac+15)}, {v(ac+7)}, {s(sM+8,2)}",
                  f"buffer_store_dwordx4 {v(ac+16,4)}, {v(self.OA+i)}, {s(SWS,4)}, 0 offen" + self.sc(),
                  f"v_mul_f32 {v(ac+4)}, {v(ac+4)}, {v(ac+6)}", f"v_mul_f32 {v(ac+5)}, {v(ac+5)}, {v(ac+6)}", cv(ac+4, ac+4),
                  f"buffer_store_dword {v(ac+4)}, {v(self.OE+i)}, {s(SWS,4)}, 0 offen" + self.sc()]
            if self.c.x_noex: r[-1] = f"buffer_store_dword {v(ac+4)}, v8, {s(SWS,4)}, 0 offen"
            return r
        halo = [(KB+18, KB), (KB+20, KB+2), (KB+22, KB+4), (VB+6, VB), (VB+14, VB+8), (VE+6, VE)]
        S = []
        S += packkv(2) + packq(2) + packve(2)
        S += [f"ds_write_b64 {v(self.HW)}, {v(x,2)} offset:{512*k}" for k, (x, _) in enumerate(halo)]
        S += packkv(1) + packkv(0) + packq(1) + packve(1) + smm(2)
        S += ["s_waitcnt lgkmcnt(0)", "s_barrier"]
        S += [f"ds_read_b64 {v(y,2)}, {v(self.HR)} offset:{512*k}" for k, (_, y) in enumerate(halo)]
        S += packq(0) + packve(0) + smm(1) + merge(2) + smm(0) + merge(1) + merge(0)
        R = [red(i) for i in (2, 1, 0)]
        for k in range(6):
            for t in range(3): S += R[t][k]
        n1 = len(S)
        S += expo(2) + pv(2) + expo(1) + pv(1)
        n2 = len(S)
        S += expo(0) + fin(2) + pv(0) + fin(1) + fin(0)
        fill = []
        for it in wo: fill += [it[0], it[1]]
        if self.c.fused:
            fill = ["v_mov_b32 v3, 0", f"buffer_load_dword v4, v3, {s(SDBG,4)}, 0 offen sc1"] + fill
        A(weave(S, fill, span=n2))
    def go_check(self):
        A = self.A; l0 = self.lab("go"); l1 = self.lab("gok")
        A(f"s_mov_b32 {s(sCnt)}, {self.c.poll_max}", f"{l0}:", f"v_readfirstlane_b32 {s(sT0)}, v4", f"s_cmp_lg_u32 {s(sT0)}, 0",
          f"s_cbranch_scc1 {l1}", f"s_sub_u32 {s(sCnt)}, {s(sCnt)}, 1", f"s_cbranch_scc1 {l1}",
          f"buffer_load_dword v4, v3, {s(SDBG,4)}, 0 offen sc1", "s_waitcnt vmcnt(0)", f"s_branch {l0}", f"{l1}:")
    def poll(self, pa):
        A = self.A; l0 = self.lab("poll"); l1 = self.lab("pok")
        A(f"s_mov_b32 {s(sCnt)}, {self.c.poll_max}", f"{l0}:", [f"s_sleep {self.c.psleep}"] if self.c.psleep else [], f"buffer_load_dword v4, {v(pa)}, {s(SWS,4)}, 0 offen sc1",
          f"s_sub_u32 {s(sCnt)}, {s(sCnt)}, 1", f"s_cbranch_scc1 {l1}",
          "v_cmp_eq_u32 vcc, 0, v4", "s_nop 4", f"s_cbranch_vccnz {l0}", f"{l1}:")
    def b2(self):
        A = self.A; c = self.c
        OF, AC2, WV, AW = 28, 100, 124, 20
        def wreg(j, T, hh):
            if j < 10: return a(24*j + 4*T + 2*hh, 2)
            if j < 15: return v(WV + 24*(j-10) + 4*T + 2*hh, 2)
            return a(24*(j-15) + 4*T + 2*hh, 2)
        def wop(j, T):
            if j < 10: return a(24*j + 4*T, 4)
            if j < 15: return v(WV + 24*(j-10) + 4*T, 4)
            return a(24*(j-15) + 4*T, 4)
        def rd(j):
            return [f"ds_read_b64_tr_b16 {wreg(j,T,hh)}, {v(AW + (T&1) + (2 if j >= 10 else 0))} offset:{(j%10)*6144 + hh*768 + 32*T}"
                    for T in range(6) for hh in range(2)]
        addr = ["v_bfe_u32 v5, v0, 2, 2", "v_lshl_add_u32 v5, v2, 3, v5", "v_mul_u32_u24 v5, 192, v5", "v_and_b32 v6, 3, v0",
                "v_lshl_add_u32 v5, v6, 3, v5", f"v_add_u32 v5, {self.WO}, v5", "v_and_b32 v6, 1, v2", "v_lshlrev_b32 v6, 5, v6",
                f"v_add_u32 {v(AW)}, v5, v6", f"v_sub_u32 {v(AW+1)}, v5, v6",
                f"v_add_u32 {v(AW+2)}, 61440, {v(AW)}", f"v_add_u32 {v(AW+3)}, 61440, {v(AW+1)}",
                f"s_mul_i32 {s(sT0)}, {s(sIdx)}, 18432", f"v_lshl_add_u32 v24, v0, 4, {s(sT0)}",
                f"s_lshl_b32 {s(sT0)}, {s(sIdx)}, 4", f"v_add_u32 v5, {s(sT0)}, v1", "v_and_b32 v7, 1023, v5", "v_lshrrev_b32 v5, 10, v5",
                "v_lshl_or_b32 v5, v7, 1, v5", "v_mul_u32_u24 v5, 2304, v5", "v_lshrrev_b32 v7, 1, v2", "v_lshl_add_u32 v6, v7, 4, v6",
                f"v_add3_u32 v25, v5, v6, {s(sCg2)}"]
        addr += [f"s_mov_b32 {s(sK+k)}, {4096*(k+1)}" for k in range(4)]
        old = [f"buffer_load_dwordx4 {v(OF+4*j,4)}, v24, {s(SWS,4)}, {s(sK+j//4-1) if j >= 4 else 0} offen offset:{1024*(j%4)}" + self.sc()
               for j in range(18)]
        allrd = sum((rd(j) for j in range(15)), [])
        if c.fused:
            self.stamp('att')
            A(addr)
            A("s_waitcnt vmcnt(6)")
            self.stamp('wo')
            A("s_barrier")
            self.go_check()
            self.stamp('go')
            A(allrd[:c.nb1])
            self.stamp('rd1')
            A("v_mov_b32 v5, 1", "s_waitcnt vmcnt(0)", f"buffer_store_dword v5, {v(self.FA)}, {s(SWS,4)}, 0 offen sc1")
            self.stamp(4)
            A(allrd[c.nb1:])
            self.stamp('rd2')
            self.poll(self.PA)
            self.stamp(5)
            A(old)
        else:
            for it in self.wo_items(): A(it)
            A(addr); A(old)
            A("s_waitcnt vmcnt(18)", "s_barrier")
            self.stamp(2)
            A(allrd)
        for j in range(18):
            m = [f"{MF} {v(AC2+4*T,4)}, {wop(j,T)}, {v(OF+4*j,4)}, {v(AC2+4*T,4) if j else 0}" for T in range(6)]
            A(weave(m, rd(j+14) if 1 <= j <= 3 else []))
        self.stamp(6)
        cv = lambda d, x: f"v_cvt_pk_bf16_f32 {v(d)}, {v(x)}, {v(x+1)}"
        for T in range(6): A(cv(OF+2*T, AC2+4*T), cv(OF+2*T+1, AC2+4*T+2))
        for P in range(3):
            A(f"v_permlane16_swap_b32 {v(OF+4*P)}, {v(OF+4*P+2)}", f"v_permlane16_swap_b32 {v(OF+4*P+1)}, {v(OF+4*P+3)}",
              f"buffer_store_dwordx4 {v(OF+4*P,4)}, v25, {s(SOUT,4)}, 0 offen offset:{1152+64*P}")

    aVX, aVM, aFR, aACC, aF, aUA, aSV, aFA, aPA, aWA = 10, 14, 28, 124, 204, 210, 211, 220, 221, 222
    aLW, aLM, aLR, aUR, aUD, aT = 224, 225, 226, 227, 228, 229
    def a1_setup(self):
        A = self.A
        A(f"s_sub_u32 {s(sIdx)}, {s(sIdx)}, 24", f"s_lshr_b32 {s(sRb)}, {s(sXc)}, 1", f"s_lshl_b32 {s(sRb)}, {s(sRb)}, 2",
          f"s_lshr_b32 {s(sT0)}, {s(sIdx)}, 1", f"s_add_u32 {s(sRb)}, {s(sRb)}, {s(sT0)}", f"s_and_b32 {s(sHg)}, {s(sXc)}, 1",
          f"s_lshl_b32 {s(sHg)}, {s(sHg)}, 1", f"s_and_b32 {s(sT0)}, {s(sIdx)}, 1", f"s_add_u32 {s(sHg)}, {s(sHg)}, {s(sT0)}")
        srd(A, SX, 2048*1152); srd(A, SW, 576*1152); srd(A, SW2, 2048*4096); srd(A, SW3, 2048*4096)
        A(f"s_lshl_b32 {s(sCX)}, {s(sWave)}, 12", f"s_mul_i32 {s(sCW)}, {s(sWave)}, 5120", f"s_add_u32 {s(sCW)}, {s(sCW)}, 16384")
        A("v_lshrrev_b32 v3, 3, v0", "v_and_b32 v4, 7, v0",
          f"s_lshl_b32 {s(sT0)}, {s(sRb)}, 3", f"s_lshl_b32 {s(sT1)}, {s(sWave)}, 1", f"s_add_u32 {s(sT0)}, {s(sT0)}, {s(sT1)}")
        for n in range(4):
            A(f"v_add_u32 v5, {8*(n&1)}, v3", "v_lshrrev_b32 v6, 1, v5", "v_xor_b32 v6, v6, v4",
              f"v_lshl_add_u32 v5, v5, 7, {s(sT0)}", f"v_add_u32 v5, {n>>1}, v5", "v_mul_u32_u24 v5, 1152, v5",
              f"v_lshl_add_u32 {v(self.aVX+n)}, v6, 4, v5")
        A(f"s_and_b32 {s(sT0)}, {s(sWave)}, 1", f"s_mul_i32 {s(sT0)}, {s(sT0)}, 40", f"s_mul_i32 {s(sT1)}, {s(sHg)}, 72")
        for n in range(5):
            A(f"v_add3_u32 v5, v3, {s(sT0)}, {8*n}", "v_bfe_u32 v6, v5, 1, 3", "v_xor_b32 v6, v6, v4",
              "v_lshrrev_b32 v7, 4, v5", "v_and_b32 v8, 3, v5", "v_lshl_add_u32 v7, v7, 2, v8", "v_bfe_u32 v8, v5, 2, 2",
              "v_mad_u32_u24 v7, v8, 18, v7", f"v_add_u32 v7, {s(sT1)}, v7", "v_mul_u32_u24 v7, 1152, v7",
              f"v_lshl_add_u32 {v(self.aVM+n)}, v6, 4, v7")
    def a1_mid(self):
        A = self.A; AD = self.AD; F = self.aF
        if self.c.fused:
            l = self.lab("nz")
            A(f"s_lshl_b32 {s(sT0)}, s2, 2", f"s_add_u32 {s(sT0)}, {s(sT0)}, {s(sWave)}", f"s_cmp_lg_u32 {s(sT0)}, 1023", f"s_cbranch_scc1 {l}")
            A("v_mov_b32 v4, 0", f"v_lshlrev_b32 v3, {2+self.c.fsh}, v0", f"v_add_u32 v3, {FL_OFF}, v3")
            for k in range(16): A(f"buffer_store_dword v4, v3, {s(SWS,4)}, 0 offen sc1", f"v_add_u32 v3, {256 << self.c.fsh}, v3")
            A("v_mov_b32 v9, 1", "v_lshlrev_b32 v3, 8, v0", "s_waitcnt vmcnt(0)", f"buffer_store_dword v9, v3, {s(SDBG,4)}, 0 offen sc1", "s_waitcnt vmcnt(0)", f"{l}:")
        A("v_lshrrev_b32 v4, 1, v1", "v_xor_b32 v4, v4, v2", "v_lshlrev_b32 v4, 4, v4", "v_lshl_add_u32 v4, v1, 7, v4",
          f"v_add_u32 {v(AD+4)}, {s(sCX)}, v4", f"v_xor_b32 {v(AD+5)}, 64, {v(AD+4)}",
          f"v_add_u32 {v(AD+6)}, 16384, v4", f"v_xor_b32 {v(AD+7)}, 64, {v(AD+6)}")
        for k in range(4): A(f"v_mov_b32 {v(AD+k)}, {v(AD+4+k)}")
        for r in range(80): A(f"v_mov_b32 {v(self.aACC+r)}, 0")
        for p in range(2):
            for k in range(2):
                A(f"v_lshl_add_u32 v3, v2, 2, {2*p+k}", "v_mul_u32_u24 v3, v3, v1", "v_and_b32 v3, 15, v3", "v_cvt_f32_u32 v3, v3",
                  "v_mul_f32 v3, 0x3d800000, v3", f"v_cos_f32 {v(4+k)}, v3", f"v_sin_f32 {v(6+k)}, v3")
            A(f"v_cvt_pk_bf16_f32 {v(F+p)}, v4, v5", f"v_cvt_pk_bf16_f32 {v(F+2+p)}, v6, v7", f"v_xor_b32 {v(F+4+p)}, 0x80008000, {v(F+p)}")
        A(f"s_lshr_b32 {s(sT0)}, {s(sRb)}, 2", f"s_lshl_b32 {s(sT0)}, {s(sT0)}, 4", f"s_lshl_b32 {s(sT1)}, {s(sWave)}, 2",
          f"s_add_u32 {s(sT0)}, {s(sT0)}, {s(sT1)}", f"s_and_b32 {s(sT1)}, {s(sRb)}, 3", f"s_add_u32 {s(sT0)}, {s(sT0)}, {s(sT1)}",
          f"s_mul_i32 {s(sT0)}, {s(sT0)}, 640", f"s_mul_i32 {s(sT1)}, {s(sHg)}, 40960", f"s_add_u32 {s(sT0)}, {s(sT0)}, {s(sT1)}",
          f"s_add_u32 {s(sT0)}, {s(sT0)}, {U_OFF}", "v_mul_u32_u24 v3, 655360, v2", "v_lshl_add_u32 v3, v1, 3, v3",
          f"v_add_u32 {v(self.aUA)}, {s(sT0)}, v3")
        for r in range(1, 4): A(f"s_mov_b32 {s(sK+r)}, {163840*r}")
        if self.c.fused:
            A(f"s_lshl_b32 {s(sT0)}, {s(sHg)}, 6", f"s_lshl_b32 {s(sT1)}, {s(sRb)}, 2", f"s_add_u32 {s(sT0)}, {s(sT0)}, {s(sT1)}",
              f"s_add_u32 {s(sT0)}, {s(sT0)}, {s(sWave)}", f"s_add_u32 {s(sT0)}, {s(sT0)}, 768", f"s_lshl_b32 {s(sT0)}, {s(sT0)}, {2+self.c.fsh}",
              f"s_add_u32 {s(sT0)}, {s(sT0)}, {FL_OFF}", f"v_mov_b32 v4, {s(sT0)}", f"v_mov_b32 v9, {OOB}", "v_cmp_eq_u32 vcc, 0, v0",
              f"v_cndmask_b32 {v(self.aFA)}, v9, v4, vcc")
            self.a2_setup()
    def a2_setup(self):
        A = self.A
        A(f"v_mov_b32 {v(self.aT)}, {s(sWave)}")
        A(f"s_lshl_b32 {s(sV0)}, {s(sXc)}, 1", f"s_lshr_b32 {s(sT0)}, {s(sIdx)}, 2", f"s_add_u32 {s(sV0)}, {s(sV0)}, {s(sT0)}",
          f"s_and_b32 {s(sCg2)}, {s(sIdx)}, 3")
        A(f"s_lshl_b32 {s(sT0)}, {s(sWave)}, 9", f"s_add_u32 {s(sT0)}, {s(sT0)}, {s(sV0)}",
          f"v_lshl_add_u32 v3, v1, 4, {s(sT0)}", "v_lshlrev_b32 v3, 12, v3", f"v_lshl_add_u32 {v(self.aWA)}, v2, 4, v3",
          f"v_add_u32 {v(self.aWA+1)}, {256*4096}, {v(self.aWA)}")
        A(f"s_mul_i32 {s(sT1)}, {s(sCg2)}, 144", f"s_sub_u32 {s(sT2)}, 1008, {s(sT1)}")
        for n in range(9):
            A(f"v_add_u32 v3, {64*n}, v0")
            div(A, 4, 3, 9, 576)
            A("v_mul_u32_u24 v5, 9, v4", "v_sub_u32 v5, v3, v5", "v_and_b32 v6, 31, v4", f"v_lshl_add_u32 v6, v6, 4, {s(sT0)}",
              "v_sub_u32 v7, 0, v6", "v_and_b32 v7, 2047, v7", "v_cmp_le_u32 vcc, 32, v4", f"v_mov_b32 v8, {s(sT1)}", f"v_mov_b32 v3, {s(sT2)}",
              "v_cndmask_b32 v6, v6, v7, vcc", "v_cndmask_b32 v8, v8, v3, vcc", "v_mul_u32_u24 v6, 2304, v6",
              "v_lshl_add_u32 v5, v5, 4, v8", f"v_add_u32 {v(self.aSV+n)}, v5, v6")
        A(f"s_mul_i32 {s(sT1)}, {s(sWave)}, 9216", f"s_add_u32 {s(sT1)}, {s(sT1)}, 40960",
          "v_mul_u32_u24 v3, 144, v1", "v_mul_u32_u24 v4, 36, v2", f"v_add3_u32 {v(self.aLW)}, v3, v4, {s(sT1)}",
          f"v_sub_u32 v4, {4608+108}, v4", f"v_add3_u32 {v(self.aLM)}, v3, v4, {s(sT1)}", f"v_lshl_add_u32 {v(self.aLR)}, v0, 4, {s(sT1)}",
          "v_mul_u32_u24 v3, 640, v2", f"v_lshl_add_u32 {v(self.aUR)}, v1, 3, v3")
        A(f"s_mul_i32 {s(sT1)}, {s(sV0)}, 163840", f"s_mul_i32 {s(sT2)}, {s(sCg2)}, 40960", f"s_add_u32 {s(sT1)}, {s(sT1)}, {s(sT2)}",
          f"s_lshl_b32 {s(sT2)}, {s(sWave)}, 10", f"s_add_u32 {s(sT1)}, {s(sT1)}, {s(sT2)}", f"s_add_u32 {s(sT1)}, {s(sT1)}, {U_OFF}",
          f"v_lshl_add_u32 {v(self.aUD)}, v0, 4, {s(sT1)}")
        if self.c.fused:
            A(f"s_lshl_b32 {s(sT1)}, {s(sCg2)}, 6", f"s_add_u32 {s(sT1)}, {s(sT1)}, 768", f"v_add_u32 v3, {s(sT1)}, v0",
              f"v_lshlrev_b32 v3, {2+self.c.fsh}, v3", f"v_add_u32 {v(self.aPA)}, {FL_OFF}, v3")
            if self.c.pref:
                A(f"s_sub_u32 {s(sT1)}, s2, 192", f"s_lshl_b32 {s(sT1)}, {s(sT1)}, 1", f"s_and_b32 {s(sT2)}, {s(sWave)}, 1",
                  f"s_add_u32 {s(sT1)}, {s(sT1)}, {s(sT2)}", f"s_mul_i32 {s(sT1)}, {s(sT1)}, {41*128}", f"v_lshl_add_u32 v3, v0, 7, {s(sT1)}",
                  f"v_mov_b32 v9, {OOB}", "v_cmp_gt_u32 vcc, 41, v0", f"v_cndmask_b32 v3, v9, v3, vcc",
                  f"s_lshl_b32 {s(sT1)}, {s(sCg2)}, 9", f"s_add_u32 {s(sT1)}, {s(sT1)}, {s(sV0)}", "v_lshrrev_b32 v4, 1, v0",
                  f"v_lshl_add_u32 v4, v4, 4, {s(sT1)}", "v_and_b32 v5, 1, v0", "v_lshlrev_b32 v5, 7, v5", "v_lshl_add_u32 v4, v4, 12, v5",
                  f"v_cmp_gt_u32 vcc, 2, {v(self.aT)}", f"v_cndmask_b32 {v(self.aT)}, v4, v3, vcc")
    def tw_items(self):
        return [[[], f"buffer_load_dwordx4 {a(32*tt+8*l+4*im,4)}, {v(self.aWA+tt)}, {s(SW3 if im else SW2,4)}, 0 offen offset:{64*l}"]
                for tt in range(2) for im in range(2) for l in range(4)]
    def a1_main(self):
        A = self.A; FR, AD, ACC = self.aFR, self.AD, self.aACC
        def dma(n):
            if n < 4: return [f"s_add_u32 m0, {s(sLX)}, {1024*n}", f"buffer_load_dwordx4 {v(self.aVX+n)}, {s(SX,4)}, {s(sOffX)} offen {self.c.dflag} lds"]
            n -= 4
            return [f"s_add_u32 m0, {s(sLW)}, {1024*n}", f"buffer_load_dwordx4 {v(self.aVM+n)}, {s(SW,4)}, {s(sOffW)} offen {self.c.dflag} lds"]
        def reads(st, ks):
            b = FR + 48*st
            x = [f"ds_read_b128 {v(b+4*u,4)}, {v(AD+ks)} offset:{2048*u}" for u in range(2)]
            m = [f"ds_read_b128 {v(b+8+4*T,4)}, {v(AD+2+ks)} offset:{2048*T}" for T in range(10)]
            return m[:1] + x + m[1:]
        def mfmas(st):
            b = FR + 48*st; r = []
            for T in range(10):
                for u in range(2):
                    d = v(ACC + 40*u + 8*(T % 5) + 4*(T // 5), 4)
                    r.append(f"{MF} {d}, {v(b+4*u,4)}, {v(b+8+4*T,4)}, {d}")
            return r
        radv = [f"v_add_u32 {v(AD+k)}, {s(sSlotR)}, {v(AD+4+k)}" for k in range(4)]
        self.extra_vm = 0
        tw = self.tw_items() if self.c.fused else []
        tail = [tw[0:4], tw[4:8], tw[8:12], tw[12:16]]
        self.staged(9, dma, 36864, 128, 128, reads, mfmas, radv, self.c.LcA, self.a1_mid, tail, self.a_ptrs, {},
                    [f"buffer_load_dword {v(self.aT)}, {v(self.aT)}, s[72:75], 0 offen"] if self.c.fused and self.c.pref else [])
        cv = lambda d, x, y: f"v_cvt_pk_bf16_f32 {v(d)}, {v(x)}, {v(y)}"
        if self.c.fused:
            A("v_mov_b32 v3, 0", f"buffer_load_dword v4, v3, {s(SDBG,4)}, 0 offen sc1")
        def pk(et):
            return [cv(FR+8*et+4*u+k, ACC+40*u+8*et+2*k, ACC+40*u+8*et+2*k+1) for u in range(2) for k in range(4)]
        def mm(et):
            return [f"{MF} {v(ACC+40*u+8*et+4*im,4)}, {v(self.aF+2*im,4)}, {v(FR+8*et+4*u,4)}, 0" for u in range(2) for im in range(2)]
        def st(et):
            r = []
            for k in range(4):
                d = FR + 48 + 8*et + 2*k
                r += [cv(d, ACC+8*et+k, ACC+40+8*et+k), cv(d+1, ACC+8*et+4+k, ACC+44+8*et+k),
                      f"buffer_store_dwordx2 {v(d,2)}, {v(self.aUA)}, {s(SWS,4)}, {s(sK+k) if k else 0} offen offset:{128*et}" + self.sc()]
            return r
        A(pk(0), pk(1), mm(0), pk(2), mm(1), pk(3), st(0), mm(2), pk(4), st(1), mm(3), st(2), mm(4), st(3), st(4))
    def a2(self):
        A = self.A; c = self.c
        W, ACC, UF = 28, 124, 164
        perm = [0, 4, 2, 6, 1, 5, 3, 7]
        mv = [f"v_accvgpr_read_b32 {v(W+8*b+k)}, {a(8*b+perm[k])}" for b in range(8) for k in range(8)]
        dm = []
        for n in range(10):
            dm += [f"s_mov_b32 {s(sT1)}, {4096*n}", f"s_add_u32 m0, {s(sT0)}, {4096*n}",
                   f"buffer_load_dwordx4 {v(self.aUD)}, {s(SWS,4)}, {s(sT1)} offen{self.sc()} lds"]
        if c.fused:
            A("s_waitcnt vmcnt(20)")
            self.go_check()
            A(mv)
            A("v_mov_b32 v5, 1", "s_waitcnt vmcnt(0)", f"buffer_store_dword v5, {v(self.aFA)}, {s(SWS,4)}, 0 offen sc1")
            self.stamp(4)
            A("s_barrier")
            self.poll(self.aPA)
            self.stamp(5)
            A(f"s_lshl_b32 {s(sT0)}, {s(sWave)}, 10")
            A(dm)
        else:
            for it in self.tw_items(): A(it)
            A(f"s_lshl_b32 {s(sT0)}, {s(sWave)}, 10")
            A(dm); A(mv)
        A("s_waitcnt vmcnt(0)", "s_barrier")
        def rd(k):
            l, h = k >> 1, k & 1
            return [f"ds_read_b64 {v(UF+20*(k&1)+4*et+2*p,2)}, {v(self.aUR)} offset:{(16*l+4*(h+2*p))*640+128*et}" for et in range(5) for p in range(2)]
        A(rd(0))
        for k in range(8):
            m = [f"{MF} {v(ACC+20*tt+4*et,4)}, {v(UF+20*(k&1)+4*et,4)}, {v(W+32*tt+4*k,4)}, {v(ACC+20*tt+4*et,4) if k else 0}"
                 for et in range(5) for tt in range(2)]
            A(weave(m, rd(k+1) if k < 7 else [], span=7))
        self.stamp(6)
        cv = lambda d, x, y: f"v_cvt_pk_bf16_f32 {v(d)}, {v(x)}, {v(y)}"
        n = 0
        for var in range(2):
            for tt in range(2):
                b = ACC + 20*tt
                for k in range(9):
                    d = W + n; n += 1
                    A(cv(d, b+2*k, b+2*k+1) if var == 0 else cv(d, b+18-2*k, b+17-2*k),
                      f"ds_write_b32 {v(self.aLM if var else self.aLW)}, {v(d)} offset:{2304*tt+4*k}")
        A("s_waitcnt lgkmcnt(0)")
        for n in range(9): A(f"ds_read_b128 {v(W+40+4*n,4)}, {v(self.aLR)} offset:{1024*n}")
        for n in range(9): A(f"buffer_store_dwordx4 {v(W+40+4*n,4)}, {v(self.aSV+n)}, {s(SOUT,4)}, 0 offen")

    def a_ptrs(self):
        A = self.A
        A(f"s_cmp_ge_u32 {s(sWave)}, 2", "s_waitcnt lgkmcnt(0)", f"s_cselect_b64 {s(SW,2)}, s[12:13], s[10:11]")
        if self.c.fused and self.c.pref:
            A("s_cselect_b64 s[72:73], s[6:7], s[18:19]", f"s_cselect_b32 s74, {s(SW2+2)}, {s(SW+2)}", "s_mov_b32 s75, 0x20000",
              f"s_cmp_eq_u32 {s(sWave)}, 3", "s_cselect_b64 s[72:73], s[8:9], s[72:73]")
        self.ptrs([(SX, 4), (SW2, 6), (SW3, 8)])

    def build(self):
        A = self.A; c = self.c
        k1 = KN + "_kernel"; k2 = "second_kernel"
        A('.amdgcn_target "amdgcn-amd-amdhsa--gfx950"', ".text")
        self.entry(k1, "L_A", "L_end", rot=True)
        self.b1_setup()
        wo = self.b1_main()
        self.stamp(3)
        self.attention(wo)
        if c.fused: self.b2()
        self.finish_role("L_end")
        A("L_A:")
        self.a1_setup()
        self.a1_main()
        self.stamp(3)
        if c.fused: self.a2()
        self.finish_role("L_end")
        A("L_end:", "s_endpgm")
        names = [k1]
        if not c.fused:
            names.append(k2)
            self.entry(k2, "L_A2", "L_end2")
            srd(A, SW2, 576*1152)
            A(f"s_mul_i32 {s(sCX)}, {s(sWave)}, 3072")
            self.b2_setup()
            A("s_waitcnt lgkmcnt(0)"); self.ptrs([(SW2, 18)])
            self.b2()
            self.finish_role("L_end2", 1)
            A("L_A2:")
            A(f"s_sub_u32 {s(sIdx)}, {s(sIdx)}, 24")
            srd(A, SW2, 2048*4096); srd(A, SW3, 2048*4096)
            self.a2_setup()
            A("s_waitcnt lgkmcnt(0)"); self.ptrs([(SW2, 6), (SW3, 8)])
            self.a2()
            self.finish_role("L_end2", 1)
            A("L_end2:", "s_endpgm")
        body = A.finish(names, verbose=True)
        hdr = "; FNet 2-D DFT (two-step, mirrored) + sliding dilated attention, generated by my own script\n"
        if c.fused: hdr += "; @launch grid=(256,1,1) block=(256,1,1) lds=163840\n"
        else:
            for n in names: hdr += f"; @launch kernel={n} grid=(256,1,1) block=(256,1,1) lds=163840\n"
        tail = '.section .rodata,"a"\n'
        for n in names:
            tail += f""".p2align 6
.amdhsa_kernel {n}
  .amdhsa_next_free_vgpr 512
  .amdhsa_next_free_sgpr 102
  .amdhsa_accum_offset 256
  .amdhsa_group_segment_fixed_size 0
  .amdhsa_kernarg_size 88
  .amdhsa_user_sgpr_count 2
  .amdhsa_user_sgpr_kernarg_segment_ptr 1
  .amdhsa_system_sgpr_workgroup_id_x 1
.end_amdhsa_kernel
"""
        return hdr + body + tail

def make(path, **kw):
    c = Cfg()
    for k, x in kw.items():
        assert hasattr(c, k), k
        setattr(c, k, x)
    open(path, 'w').write(Gen(c).build())

if __name__ == '__main__':
    kw = {}
    for x in sys.argv[2:]:
        k, val = x.split('='); kw[k] = eval(val)
    make(sys.argv[1], **kw)
```

```python
import sys
from gen import make
R2 = lambda rl, hl, xq, xp: ((xq + 2*xp) & 3) + (5 if (rl + hl) & 1 else 0)
R2b = lambda rl, hl, xq, xp: ((xq + 2*xp) & 3) + (4 if (rl + hl) & 1 else 0)
R4 = lambda rl, hl, xq, xp: [0, 2, 4, 7][(rl + hl) & 3] + ((xq + xp) & 1)
R3 = lambda rl, hl, xq, xp: 3*((rl + hl) % 3) + (xq + xp) % 3
R1 = lambda rl, hl, xq, xp: [0, 2, 4, 7][(xq + 2*xp) & 3]
R9 = lambda rl, hl, xq, xp: (3*rl//2 + [0,2,4,7][hl] + xq + 2*xp)
for a in sys.argv[1:]:
    n, kw = a.split(':', 1)
    make(n, **eval('dict(' + kw + ')'))
```
